```python
import torch

def _softmax(x, axis=-1):
    return torch.softmax(x, dim=axis)

def _gelu(x):
    return torch.nn.functional.gelu(x, approximate='tanh')

def _silu(x):
    return torch.nn.functional.silu(x)

def _sigmoid(x):
    return torch.sigmoid(x)

def _layernorm(x, axis=-1, eps=1e-05):
    m = x.mean(dim=axis, keepdim=True)
    v = x.var(dim=axis, keepdim=True, unbiased=False)
    return (x - m) / torch.sqrt(v + eps)

def _scatter_add(tgt, idx, src, axis=0):
    return tgt.clone().index_add_(axis, idx, src)

def _segment_sum(src, seg, n):
    out = torch.zeros((n,) + src.shape[1:], dtype=src.dtype)
    return out.index_add_(0, seg, src)

def _pad(x, pw):
    flat = tuple((v for pair in reversed(pw) for v in pair))
    return torch.nn.functional.pad(x, flat)
kernel_name = 'parallel_sum__linear_attn_block__mixer_gmlp__prompt'

def setup_inputs():

    _w = lambda a: (lambda t: t.to(torch.bfloat16) if t.is_floating_point() else t)(torch.as_tensor(a))

    def _A_setup():
        B, S, D = (1, 2048, 640)
        return {'x': _w((lambda *s: torch.randn(*s, dtype=torch.bfloat16) * 0.05)(B, S, D)), 'wqkv': _w((lambda *s: torch.randn(*s, dtype=torch.bfloat16) * 0.8)(D, 3 * D)), 'wo': _w((lambda *s: torch.randn(*s, dtype=torch.bfloat16) * 0.2)(D, D))}
    _A_in = _A_setup()

    def _B_setup():
        B, S, D, F = (1, 2048, 640, 1536)
        Fh = F // 2
        return {'x': _w((lambda *s: torch.randn(*s, dtype=torch.bfloat16) * 0.05)(B, S, D)), 'w_in': _w((lambda *s: torch.randn(*s, dtype=torch.bfloat16) * 0.4)(D, 2 * Fh)), 'w_sp': _w(0.01 * (lambda *s: torch.randn(*s, dtype=torch.bfloat16) * 0.4)(S, S)), 'b_sp': _w(1.0 + 0.01 * (lambda *s: torch.randn(*s, dtype=torch.bfloat16) * 0.05)(S)), 'w_out': _w((lambda *s: torch.randn(*s, dtype=torch.bfloat16) * 0.05)(Fh, D))}
    _B_in = _B_setup()
    return {'A_x': _A_in['x'], 'A_wqkv': _A_in['wqkv'], 'A_wo': _A_in['wo'], 'B_x': _B_in['x'], 'B_w_in': _B_in['w_in'], 'B_w_sp': _B_in['w_sp'], 'B_b_sp': _B_in['b_sp'], 'B_w_out': _B_in['w_out']}

def reference(A_x, A_wqkv, A_wo, B_x, B_w_in, B_w_sp, B_b_sp, B_w_out):

    def _A_ref(x, wqkv, wo):
        B, S, D = x.shape
        H = 32
        Dh = D // H
        qkv = (lambda x, *d: x.permute(*d))((x @ wqkv).reshape(B, S, 3, H, Dh), 2, 0, 3, 1, 4)
        q, k, v = (qkv[0], qkv[1], qkv[2])
        phi = lambda t: torch.where(t > 0, t + 1, torch.exp(t)) + 1e-06
        pq, pk = (phi(q), phi(k))
        kv = torch.einsum('bhsd,bhse->bhde', pk, v)
        z = torch.einsum('bhsd->bhd', pk)
        num = torch.einsum('bhqd,bhde->bhqe', pq, kv)
        den = torch.einsum('bhqd,bhd->bhq', pq, z)[..., None] + 1e-06
        o = num / den
        return (lambda x, *d: x.permute(*d))(o, 0, 2, 1, 3).reshape(B, S, D) @ wo

    def _B_ref(x, w_in, w_sp, b_sp, w_out):
        B, S, D = x.shape
        F = w_in.shape[-1]
        Fh = F // 2
        z = _gelu(torch.einsum('bsd,df->bsf', x, w_in))
        z1 = z[..., :Fh].clone()
        z2 = _layernorm(z[..., Fh:], axis=-1)
        g = torch.einsum('ts,bsf->btf', w_sp, z2) + b_sp[None, :, None]
        return torch.einsum('bsf,fd->bsd', z1 * g, w_out)
    x = A_x
    xn = _layernorm(x, axis=-1)
    return x + _A_ref(xn, A_wqkv, A_wo) + _B_ref(xn, B_w_in, B_w_sp, B_b_sp, B_w_out)
```

```python
import re

TRANS = ('v_exp_f32', 'v_rcp_f32', 'v_sqrt_f32', 'v_rsq_f32', 'v_log_f32', 'v_sin_f32', 'v_cos_f32')

def _split_ops(s):
    out, depth, cur = [], 0, ''
    for ch in s:
        if ch in '[(':
            depth += 1
        elif ch in '])':
            depth -= 1
        if ch == ',' and depth == 0:
            out.append(cur.strip()); cur = ''
        else:
            cur += ch
    if cur.strip():
        out.append(cur.strip())
    return out

_REG = re.compile(r'^(?:-|\|)?(?:abs\()?([vas])(\d+|\[(\d+):(\d+)\])\)?\|?$')

def regs_of(op):
    op = op.strip()
    tok = op.split()[0] if op else ''
    if tok in ('vcc', 'exec', 'm0', 'scc'):
        return {tok}
    if tok in ('vcc_lo', 'vcc_hi'):
        return {'vcc'}
    m = _REG.match(tok)
    if not m:
        return set()
    k = m.group(1)
    if m.group(3) is not None:
        return {f'{k}{i}' for i in range(int(m.group(3)), int(m.group(4)) + 1)}
    return {f'{k}{m.group(2)}'}

class Ins:
    __slots__ = ('text', 'mn', 'kind', 'w', 'r', 'cond', 'states', 'srcc', 'passes', 'dpp', 'wide')

def parse(text, cond):
    I = Ins(); I.text = text; I.cond = cond; I.states = 1; I.srcc = set(); I.passes = 0; I.dpp = False; I.wide = False
    t = text.split(';')[0].strip()
    parts = t.split(None, 1)
    mn = parts[0]; I.mn = mn
    ops = _split_ops(parts[1]) if len(parts) > 1 else []
    R = lambda idxs: set().union(*[regs_of(ops[i]) for i in idxs if i < len(ops)]) if idxs else set()
    n = len(ops)
    I.w, I.r = set(), set()
    if mn.endswith(':'):
        I.kind = 'label'; I.states = 0
    elif mn == 's_nop':
        I.kind = 'nop'; I.states = int(ops[0], 0) + 1
    elif mn.startswith('v_mfma'):
        I.kind = 'mfma'; I.w = R([0]); I.r = R([1, 2, 3]); I.srcc = R([3])
        I.passes = 8 if '32x32x16' in mn else 4
    elif mn.startswith('v_'):
        I.kind = 'trans' if mn.split('_e32')[0] in TRANS else 'valu'
        I.dpp = ('dpp' in mn) or any(x in t for x in ('quad_perm', 'row_shr', 'row_ror', 'row_mirror', 'row_half_mirror', 'row_bcast', 'row_newbcast', 'row_shl'))
        if mn.startswith('v_permlane'):
            I.w = R([0, 1]); I.r = R([0, 1])
        elif mn.startswith('v_add_co') or mn.startswith('v_sub_co') or mn.startswith('v_addc_co') or mn.startswith('v_mad_u64'):
            I.w = R([0, 1]); I.r = R(range(2, n))
        elif mn.startswith('v_cmp'):
            I.w = R([0]); I.r = R(range(1, n))
        elif mn.startswith('v_fmac') or mn.startswith('v_dot2c') or mn.startswith('v_pk_fmac'):
            I.w = R([0]); I.r = R(range(0, n))
        else:
            I.w = R([0]); I.r = R(range(1, n))
        if mn.startswith('v_cndmask') and n == 3:
            I.r |= {'vcc'}
    elif mn.startswith('ds_'):
        I.kind = 'ds'
        if mn.startswith('ds_read') or mn.startswith('ds_bpermute') or mn.startswith('ds_permute') or mn.startswith('ds_swizzle'):
            I.w = R([0]); I.r = R(range(1, n))
        else:
            I.r = R(range(0, n))
    elif mn.startswith('buffer_') or mn.startswith('global_'):
        I.kind = 'vmem'
        if 'load' in mn:
            if re.search(r'\blds\b', t):
                I.r = R(range(0, n)) | {'m0'}; I.kind = 'vmem_lds'
            else:
                I.w = R([0]); I.r = R(range(1, n))
        else:
            I.r = R(range(0, n))
            I.wide = ('x4' in mn or 'x3' in mn)
    elif mn.startswith('s_'):
        I.kind = 'salu'
        if mn.startswith('s_cmp') or mn in ('s_waitcnt', 's_barrier', 's_endpgm', 's_setprio', 's_sleep') or mn.startswith('s_branch') or mn.startswith('s_cbranch'):
            I.r = R(range(0, n))
        elif mn.startswith('s_load'):
            I.kind = 'smem'; I.w = R([0]); I.r = R(range(1, n))
        else:
            I.w = R([0]); I.r = R(range(1, n))
            if 'saveexec' in mn:
                I.w |= {'exec'}
    else:
        I.kind = 'other'
    return I

class Asm:
    def __init__(self):
        self.items = []
        self.cond = False
        self.vmq = []
        self.ldq = []
    def raw(self, s):
        self.items.append(s)
    def __call__(self, text):
        for line in text.strip().split('\n'):
            line = line.strip()
            if not line or line.startswith(';'):
                continue
            self.items.append(parse(line, self.cond))
    def label(self, name):
        self.items.append(parse(name + ':', self.cond))
    def vm(self, tag, text):
        self(text); self.vmq.append(tag)
    def ld(self, tag, text):
        self(text); self.ldq.append(tag)
    def _cnt(self, q, tag):
        idx = [i for i, t in enumerate(q) if t == tag]
        if not idx:
            return None
        return len(q) - 1 - idx[-1]
    def wait_vm(self, tag):
        n = self._cnt(self.vmq, tag)
        if n is None:
            return
        assert n <= 63, n
        self(f's_waitcnt vmcnt({n})')
        self.vmq = self.vmq[len(self.vmq) - n:] if n else []
    def wait_ld(self, tag):
        n = self._cnt(self.ldq, tag)
        if n is None:
            return
        n = min(n, 15)
        self(f's_waitcnt lgkmcnt({n})')
        self.ldq = self.ldq[len(self.ldq) - n:] if n else []
    def wait_ld_all(self):
        self('s_waitcnt lgkmcnt(0)'); self.ldq = []
    def wait_vm_all(self):
        self('s_waitcnt vmcnt(0)'); self.vmq = []
    def reset_counters(self):
        self.vmq = []; self.ldq = []
    def render(self):
        out = []
        hist = []
        pf = 0; pu = 0
        def need(I):
            req = 0
            for (P, f, u) in reversed(hist):
                d = (pf - f) if I.cond else (pu - u)
                if pf - f > 24:
                    break
                k = 0
                Pv = P.kind in ('valu', 'trans')
                Iv = I.kind in ('valu', 'trans')
                if Pv and I.kind == 'mfma' and (P.w & I.r):
                    k = max(k, 2)
                if P.kind == 'mfma':
                    big = 12 if P.passes == 8 else 8
                    if I.kind == 'mfma':
                        if (P.w & (I.r - I.srcc)):
                            k = max(k, big)
                        if (P.w & I.srcc) and not (P.w == I.srcc and P.passes == I.passes):
                            k = max(k, 10 if P.passes == 8 else 6)
                    elif I.kind in ('valu', 'trans', 'ds', 'vmem', 'vmem_lds'):
                        if P.w & (I.r | I.w):
                            k = max(k, big)
                    if Iv and (P.srcc & I.w):
                        k = max(k, 7 if P.passes == 8 else 3)
                if Pv:
                    sw = {x for x in P.w if x[0] == 's' or x == 'vcc'}
                    if sw:
                        if Iv and (sw & I.r):
                            k = max(k, 2)
                        if I.kind in ('vmem', 'vmem_lds') and (sw & I.r):
                            k = max(k, 5)
                        if I.kind in ('salu', 'smem') and (sw & I.r):
                            k = max(k, 2)
                    if P.kind == 'trans' and I.kind in ('valu', 'mfma') and (P.w & I.r):
                        k = max(k, 1)
                    if Iv and (P.w & I.r):
                        if I.dpp or I.mn.startswith('v_permlane'):
                            k = max(k, 2)
                        if I.mn.startswith('v_readfirstlane') or I.mn.startswith('v_readlane'):
                            k = max(k, 1)
                    if 'exec' in P.w:
                        k = max(k, 5)
                if P.kind == 'salu' and 'm0' in P.w and I.kind == 'vmem_lds':
                    k = max(k, 1)
                if P.kind == 'vmem' and P.wide and (P.r & I.w):
                    k = max(k, 2)
                if k - d > req:
                    req = k - d
            return req
        for it in self.items:
            if isinstance(it, str):
                out.append(it); continue
            if it.kind == 'label':
                out.append(it.text); continue
            r = need(it)
            if r > 0:
                nop = parse(f's_nop {r - 1}', it.cond)
                out.append('    ' + nop.text + '    ; hazard pad')
                pf += r
                if not it.cond:
                    pu += r
            out.append('    ' + it.text)
            pf += it.states
            if not it.cond:
                pu += it.states
            hist.append((it, pf, pu))
            if len(hist) > 64:
                hist = hist[-48:]
        return '\n'.join(out) + '\n'
```

```python
import sys, struct
sys.path.insert(0, 'gen')
from dsl import Asm

NAME = 'parallel_sum__linear_attn_block__mixer_gmlp__prompt'

T1   = 0
PQ   = 8388608
Z1   = PQ + 2621440
Z2NT = Z1 + 3145728
KVT  = Z2NT + 3145728
ZP   = KVT + 65536
WT   = KVT + 131072
OH   = 19398656
WS_END = OH + 5767168

def f32(x):
    return '0x%08x' % struct.unpack('<I', struct.pack('<f', x))[0]

LOG2E = 1.4426950408889634
KBETA = 0.7978845608028654
KKAPPA = 0.044715

def srd(A, d, b, nbytes):
    A(f's_mov_b32 s{d}, s{b}')
    A(f's_and_b32 s{d+1}, s{b+1}, 0xffff')
    A(f's_mov_b32 s{d+2}, {nbytes}')
    A(f's_mov_b32 s{d+3}, 0x00020000')

def rnd_pair(A, p, a, b):
    A(f'v_cvt_pk_bf16_f32 v{p}, v{a}, v{b}')
    A(f'v_lshlrev_b32 v{a}, 16, v{p}')
    A(f'v_and_b32 v{b}, 0xffff0000, v{p}')

G1_STAGE = 32768
G1_MB = 4 * G1_STAGE
G1_RI = G1_MB + 512
G1_CS = G1_RI + 512
G1_LDS = G1_CS + 1024

ACC = 32
FX = lambda b, i: 64 + 12 * b + 4 * i
FW = lambda b: 64 + 12 * b + 8
ST = 88
VA = lambda s, ks: 96 + 4 * s + ks
VB = lambda s: 104 + s
VS = lambda s: 106 + s
VOA = 108; VOB = 110
RS, RQ, CS, ONES = 112, 113, 114, 115
T0 = 116

def vr(b, n=4):
    return f'v[{b}:{b+n-1}]'

def g1_lane_setup(A):
    A('''
    v_and_b32 v1, 63, v0
    v_and_b32 v2, 31, v1
    v_lshrrev_b32 v3, 5, v1
    v_lshrrev_b32 v4, 1, v1
    v_and_b32 v4, 7, v4
    v_xor_b32 v4, v3, v4
    v_lshlrev_b32 v4, 4, v4
    v_lshlrev_b32 v5, 7, v2
    v_add_u32 v4, v4, v5
    s_lshl_b32 s33, s29, 13
    v_add_u32 v4, s33, v4
    ''')
    for ks in range(4):
        A(f'v_xor_b32 v{VA(0,ks)}, {ks<<5}, v4')
        A(f'v_add_u32 v{VA(1,ks)}, 0x10000, v{VA(0,ks)}')
    A('''
    v_and_b32 v5, 15, v1
    v_lshrrev_b32 v5, 2, v5
    v_and_b32 v6, 3, v1
    v_lshlrev_b32 v7, 3, v3
    v_add_u32 v7, v7, v5
    v_lshlrev_b32 v7, 8, v7
    v_xor_b32 v8, s30, v5
    v_lshlrev_b32 v8, 6, v8
    v_add_u32 v7, v7, v8
    v_lshrrev_b32 v8, 4, v1
    v_and_b32 v8, 1, v8
    v_lshlrev_b32 v8, 5, v8
    v_add_u32 v7, v7, v8
    v_lshlrev_b32 v6, 3, v6
    v_add_u32 v7, v7, v6
    ''')
    A(f'v_add_u32 v{VB(0)}, 0x4000, v7')
    A(f'v_add_u32 v{VB(1)}, 0x14000, v7')
    A('''
    v_lshrrev_b32 v5, 2, v1
    v_lshlrev_b32 v5, 7, v5
    v_and_b32 v6, 3, v1
    v_lshlrev_b32 v6, 5, v6
    v_add_u32 v5, v5, v6
    s_lshl_b32 s33, s28, 11
    ''')
    A(f'v_add_u32 v{VS(0)}, s33, v5')
    A(f'v_add_u32 v{VS(1)}, 0x10000, v{VS(0)}')
    A('''
    v_lshrrev_b32 v5, 3, v1
    s_lshl_b32 s33, s24, 7
    s_lshl_b32 s34, s28, 4
    s_add_u32 s33, s33, s34
    v_add_u32 v5, s33, v5
    s_movk_i32 s34, 1280
    v_mul_lo_u32 v5, v5, s34
    v_lshrrev_b32 v6, 4, v1
    v_and_b32 v7, 7, v1
    v_xor_b32 v8, v7, v6
    v_lshlrev_b32 v8, 4, v8
    ''')
    A(f'v_add_u32 v{VOA}, v5, v8')
    A('''
    v_add_u32 v6, 4, v6
    v_xor_b32 v8, v7, v6
    v_lshlrev_b32 v8, 4, v8
    v_add_u32 v8, v5, v8
    ''')
    A(f'v_add_u32 v{VOA+1}, {8*1280-1024}, v8')
    g1_dma_b_setup(A)

def g1_dma_b_setup(A):
    A('''
    v_lshrrev_b32 v6, 4, v1
    s_lshl_b32 s33, s28, 3
    v_add_u32 v5, s33, v6
    v_mul_lo_u32 v5, v5, s26
    v_and_b32 v7, 15, v1
    v_lshrrev_b32 v7, 2, v7
    v_xor_b32 v7, v7, v6
    v_lshlrev_b32 v7, 2, v7
    v_and_b32 v8, 3, v1
    v_add_u32 v7, v7, v8
    v_lshlrev_b32 v7, 4, v7
    v_add_u32 v5, v5, v7
    ''')
    A(f'v_add_u32 v{VOB}, s27, v5')
    A('''
    s_lshl_b32 s33, s26, 2
    s_sub_u32 s33, s33, 1024
    ''')
    A(f'v_add_u32 v{VOB+1}, s33, v{VOB}')

def g1_dma(A, c):
    st = c % 4
    A(f's_add_u32 m0, s35, {st*G1_STAGE}')
    A(f's_movk_i32 s36, {c*128}')
    A.vm(('dma', c), f'buffer_load_dwordx4 v{VOA}, s[12:15], s36 offen lds')
    A.vm(('dma', c), f'buffer_load_dwordx4 v{VOA+1}, s[12:15], s36 offen offset:1024 lds')
    A(f's_add_u32 m0, s35, {st*G1_STAGE+16384}')
    A(f's_mul_i32 s37, s38, {c}')
    A.vm(('dma', c), f'buffer_load_dwordx4 v{VOB}, s[16:19], s37 offen lds')
    A.vm(('dma', c), f'buffer_load_dwordx4 v{VOB+1}, s[16:19], s37 offen offset:1024 lds')

def g1_reads(A, t):
    c, ks = t // 4, t % 4
    st = c % 4; s = st >> 1; o = (st & 1) * G1_STAGE
    b = t & 1
    A.ld(('fr', t), f'ds_read_b128 {vr(FX(b,0))}, v{VA(s,ks)} offset:{o}')
    A.ld(('fr', t), f'ds_read_b64_tr_b16 {vr(FW(b),2)}, v{VB(s)} offset:{o + ks*4096}')
    A.ld(('fr', t), f'ds_read_b64_tr_b16 {vr(FW(b)+2,2)}, v{VB(s)} offset:{o + ks*4096 + 1024}')
    A.ld(('fr', t), f'ds_read_b128 {vr(FX(b,1))}, v{VA(s,ks)} offset:{o + 4096}')

def g1_mainloop(A, swapped):
    NC = 10
    for i in range(32):
        A(f'v_mov_b32 v{ACC+i}, 0')
    A(f'v_mov_b32 v{RS}, 0')
    A(f'v_mov_b32 v{RQ}, 0')
    A(f'v_mov_b32 v{CS}, 0')
    A(f'v_mov_b32 v{ONES}, 0x3f803f80')
    A('s_lshl_b32 s35, s28, 11')
    A('s_lshl_b32 s38, s26, 6')
    for c in range(4):
        g1_dma(A, c)
    A.wait_vm(('dma', 0))
    A('s_barrier')
    g1_reads(A, 0)
    for c in range(NC):
        st = c % 4; s = st >> 1; o = (st & 1) * G1_STAGE
        for ks in range(4):
            t = 4 * c + ks
            b = t & 1
            if ks < 3:
                g1_reads(A, t + 1)
                if ks == 0:
                    A.ld(('st', c), f'ds_read_b128 {vr(ST)}, v{VS(s)} offset:{o}')
                    A.ld(('st', c), f'ds_read_b128 {vr(ST+4)}, v{VS(s)} offset:{o+16}')
                A.wait_ld(('fr', t))
            elif c < NC - 1:
                A.wait_ld_all()
                A.wait_vm(('dma', c + 1))
                A('s_barrier')
                if c + 4 < NC:
                    g1_dma(A, c + 4)
                g1_reads(A, t + 1)
            else:
                A.wait_ld_all()
            for i in range(2):
                if swapped:
                    A(f'v_mfma_f32_32x32x16_bf16 {vr(ACC+16*i,16)}, {vr(FW(b))}, {vr(FX(b,i))}, {vr(ACC+16*i,16)}')
                else:
                    A(f'v_mfma_f32_32x32x16_bf16 {vr(ACC+16*i,16)}, {vr(FX(b,i))}, {vr(FW(b))}, {vr(ACC+16*i,16)}')
                for j in range(2):
                    A(f'v_dot2_f32_bf16 v{CS}, v{FW(b)+2*i+j}, v{ONES}, v{CS}')
            if ks == 2:
                A.wait_ld(('st', c))
                for j in range(8):
                    A(f'v_dot2_f32_bf16 v{RS}, v{ST+j}, v{ONES}, v{RS}')
                    A(f'v_dot2_f32_bf16 v{RQ}, v{ST+j}, v{ST+j}, v{RQ}')
    for r in (RS, RQ):
        A(f'v_add_f32_dpp v{r}, v{r}, v{r} quad_perm:[1,0,3,2] row_mask:0xf bank_mask:0xf')
        A(f'v_add_f32_dpp v{r}, v{r}, v{r} quad_perm:[2,3,0,1] row_mask:0xf bank_mask:0xf')
    a, b_, p, q = T0, T0 + 1, T0 + 2, T0 + 3
    A(f'v_mul_f32 v{a}, {f32(1/640)}, v{RS}')
    A(f'v_mul_f32 v{b_}, {f32(1/640)}, v{RQ}')
    A(f'v_fma_f32 v{b_}, -v{a}, v{a}, v{b_}')
    A(f'v_max_f32 v{b_}, 0, v{b_}')
    rnd_pair(A, p, a, b_)
    A(f'v_add_f32 v{b_}, {f32(1e-5)}, v{b_}')
    A(f'v_cvt_pk_bf16_f32 v{p}, v{b_}, v{b_}')
    A(f'v_lshlrev_b32 v{b_}, 16, v{p}')
    A(f'v_sqrt_f32 v{b_}, v{b_}')
    A(f'v_cvt_pk_bf16_f32 v{p}, v{b_}, v{b_}')
    A(f'v_lshlrev_b32 v{b_}, 16, v{p}')
    A(f'v_rcp_f32 v{b_}, v{b_}')
    A(f'v_lshrrev_b32 v{q}, 2, v1')
    A(f's_lshl_b32 s33, s28, 4')
    A(f'v_add_u32 v{q}, s33, v{q}')
    A(f'v_lshlrev_b32 v{q}, 2, v{q}')
    A(f'ds_write_b32 v{q}, v{a} offset:{G1_MB & 0xffff}') if G1_MB < 65536 else None
    A(f'v_add_u32 v{q}, {G1_MB}, v{q}')
    A(f'ds_write_b32 v{q}, v{a}')
    A(f'ds_write_b32 v{q}, v{b_} offset:512')
    A(f'v_mov_b32 v{p}, v{CS}')
    A(f'v_permlane32_swap_b32 v{CS}, v{p}')
    A(f'v_add_f32 v{CS}, v{CS}, v{p}')

def act_code(A, kind, regs, tmp):
    P = tmp
    OUT = tmp + 8
    E = tmp + 16
    G = tmp + 32
    if kind == 'plain':
        for k in range(8):
            A(f'v_cvt_pk_bf16_f32 v{OUT+k}, v{regs[2*k]}, v{regs[2*k+1]}')
        return OUT
    for k in range(8):
        A(f'v_cvt_pk_bf16_f32 v{P+k}, v{regs[2*k]}, v{regs[2*k+1]}')
    for k in range(8):
        A(f'v_lshlrev_b32 v{regs[2*k]}, 16, v{P+k}')
        A(f'v_and_b32 v{regs[2*k+1]}, 0xffff0000, v{P+k}')
    if kind == 'phi':
        for k in range(16):
            A(f'v_mul_f32 v{E+k}, {f32(LOG2E)}, v{regs[k]}')
        for k in range(16):
            A(f'v_exp_f32 v{E+k}, v{E+k}')
        for k in range(16):
            A(f'v_add_f32 v{G+k}, 1.0, v{regs[k]}')
        for k in range(8):
            A(f'v_cvt_pk_bf16_f32 v{P+k}, v{E+2*k}, v{E+2*k+1}')
        for k in range(8):
            A(f'v_lshlrev_b32 v{E+2*k}, 16, v{P+k}')
            A(f'v_and_b32 v{E+2*k+1}, 0xffff0000, v{P+k}')
        for k in range(16):
            A(f'v_add_f32 v{E+k}, {f32(1e-6)}, v{E+k}')
        for k0 in range(0, 16, 4):
            for k in range(k0, k0 + 4):
                A(f'v_cmp_lt_f32 s[{40+2*(k-k0)}:{41+2*(k-k0)}], 0, v{regs[k]}')
            for k in range(k0, k0 + 4):
                A(f'v_cndmask_b32 v{E+k}, v{E+k}, v{G+k}, s[{40+2*(k-k0)}:{41+2*(k-k0)}]')
        for k in range(8):
            A(f'v_cvt_pk_bf16_f32 v{OUT+k}, v{E+2*k}, v{E+2*k+1}')
        return OUT
    if kind == 'gelu':
        A(f's_mov_b32 s40, {f32(KKAPPA)}')
        for k in range(16):
            A(f'v_mul_f32 v{E+k}, v{regs[k]}, v{regs[k]}')
        for k in range(16):
            A(f'v_fma_f32 v{E+k}, v{E+k}, s40, 1.0')
        for k in range(16):
            A(f'v_mul_f32 v{G+k}, {f32(-2*KBETA*LOG2E)}, v{regs[k]}')
        for k in range(16):
            A(f'v_mul_f32 v{E+k}, v{E+k}, v{G+k}')
        for k in range(16):
            A(f'v_exp_f32 v{E+k}, v{E+k}')
        for k in range(16):
            A(f'v_add_f32 v{E+k}, 1.0, v{E+k}')
        for k in range(16):
            A(f'v_rcp_f32 v{E+k}, v{E+k}')
        for k in range(16):
            A(f'v_mul_f32 v{E+k}, v{E+k}, v{regs[k]}')
        for k in range(8):
            A(f'v_cvt_pk_bf16_f32 v{OUT+k}, v{E+2*k}, v{E+2*k+1}')
        return OUT
    raise ValueError(kind)

def swap_store(A, OUT, voff, srd_, soff, imm0):
    for gp in range(2):
        b = OUT + 4 * gp
        A(f'v_permlane32_swap_b32 v{b}, v{b+2}')
        A(f'v_permlane32_swap_b32 v{b+1}, v{b+3}')
    for gp in range(2):
        b = OUT + 4 * gp
        A.vm('st', f'buffer_store_dwordx4 {vr(b)}, v{voff}, s[{srd_}:{srd_+3}], s{soff} offen offset:{imm0 + 32*gp}')

def k1_epilogue(A, kind, lbl):
    MB4 = T0 + 8; RI4 = T0 + 24; TMP = T0 + 40
    for i in range(2):
        for g in range(4):
            A.ld('mb', f'ds_read_b128 {vr(MB4+4*g)}, v{T0+4} offset:{(32*i+8*g)*4}')
            A.ld('mb', f'ds_read_b128 {vr(RI4+4*g)}, v{T0+4} offset:{512+(32*i+8*g)*4}')
        A.wait_ld_all()
        regs = [ACC + 16 * i + k for k in range(16)]
        for k in range(16):
            A(f'v_fma_f32 v{regs[k]}, -v{MB4+k}, v{CS}, v{regs[k]}')
        for k in range(16):
            A(f'v_mul_f32 v{regs[k]}, v{regs[k]}, v{RI4+k}')
        OUT = act_code(A, kind, regs, TMP)
        swap_store(A, OUT, T0 + 5, 20, 39, 64 * i)

def gen_k1(A):
    A.label('k1_kernel')
    A('''
    s_cmp_ge_u32 s2, 256
    s_cbranch_scc1 k1_done
    s_load_dwordx4 s[4:7], s[0:1], 0
    s_load_dwordx2 s[8:9], s[0:1], 32
    s_load_dwordx2 s[10:11], s[0:1], 80
    v_lshrrev_b32 v2, 6, v0
    s_and_b32 s33, s2, 7
    s_lshr_b32 s34, s2, 3
    v_readfirstlane_b32 s28, v2
    s_lshr_b32 s24, s33, 1
    s_lshl_b32 s24, s24, 2
    s_lshr_b32 s25, s34, 3
    s_add_u32 s24, s24, s25
    s_and_b32 s25, s33, 1
    s_lshl_b32 s25, s25, 3
    s_and_b32 s34, s34, 7
    s_add_u32 s25, s25, s34
    s_lshr_b32 s29, s28, 2
    s_and_b32 s30, s28, 3
    s_waitcnt lgkmcnt(0)
    ''')
    srd(A, 12, 4, 2048 * 1280)
    srd(A, 20, 10, WS_END)
    A('''
    s_movk_i32 s26, 3840
    s_mov_b32 s18, 2457600
    s_movk_i32 s33, 1280
    s_cmp_lt_u32 s25, 10
    s_cselect_b32 s16, s6, s8
    s_cselect_b32 s17, s7, s9
    s_cselect_b32 s26, s26, 3072
    s_cselect_b32 s18, s18, 1966080
    s_cselect_b32 s33, s33, -1024
    s_lshl_b32 s27, s25, 8
    s_add_i32 s27, s27, s33
    s_and_b32 s17, s17, 0xffff
    s_mov_b32 s19, 0x00020000
    ''')
    g1_lane_setup(A)
    g1_mainloop(A, swapped=False)
    A(f'''
    s_lshl_b32 s33, s29, 6
    v_lshlrev_b32 v{T0+4}, 2, v3
    v_add_u32 v{T0+4}, s33, v{T0+4}
    v_lshlrev_b32 v{T0+4}, 2, v{T0+4}
    v_add_u32 v{T0+4}, {G1_MB}, v{T0+4}
    s_lshl_b32 s34, s30, 5
    v_add_u32 v{T0+5}, s34, v2
    v_lshlrev_b32 v{T0+5}, 12, v{T0+5}
    v_lshlrev_b32 v{T0+6}, 3, v3
    v_add_u32 v{T0+6}, s33, v{T0+6}
    v_lshlrev_b32 v{T0+6}, 1, v{T0+6}
    v_add_u32 v{T0+5}, v{T0+5}, v{T0+6}
    s_lshl_b32 s39, s25, 19
    s_lshl_b32 s33, s24, 8
    s_add_u32 s39, s39, s33
    s_waitcnt lgkmcnt(0)
    s_barrier
    s_cmp_lt_u32 s25, 5
    s_cbranch_scc1 k1_phi
    s_cmp_lt_u32 s25, 10
    s_cbranch_scc1 k1_plain
    ''')
    A.reset_counters()
    k1_epilogue(A, 'gelu', 'g')
    A('s_endpgm')
    A.label('k1_phi')
    A('s_nop 4')
    A.reset_counters()
    k1_epilogue(A, 'phi', 'p')
    A('s_endpgm')
    A.label('k1_plain')
    A('s_nop 4')
    A.reset_counters()
    k1_epilogue(A, 'plain', 'l')
    A.label('k1_done')
    A('s_endpgm')

def k2_epilogue(A, kind):
    CS4 = T0 + 8; MBI = T0 + 24; TMP = T0 + 40
    for g in range(4):
        A.ld('cs', f'ds_read_b128 {vr(CS4+4*g)}, v{T0+4} offset:{32*g}')
    for i in range(2):
        A.ld('cs', f'ds_read_b32 v{MBI+2*i}, v{T0+6} offset:{128*i}')
        A.ld('cs', f'ds_read_b32 v{MBI+2*i+1}, v{T0+6} offset:{512+128*i}')
    A.wait_ld_all()
    for i in range(2):
        regs = [ACC + 16 * i + k for k in range(16)]
        for k in range(16):
            A(f'v_fma_f32 v{regs[k]}, -v{MBI+2*i}, v{CS4+k}, v{regs[k]}')
        for k in range(16):
            A(f'v_mul_f32 v{regs[k]}, v{regs[k]}, v{MBI+2*i+1}')
        OUT = act_code(A, kind, regs, TMP)
        swap_store(A, OUT, T0 + 5 + (2 if i else 0), 20, 39, 0)

def gen_k2(A):
    A.label('k2_kernel')
    A('''
    s_cmp_ge_u32 s2, 256
    s_cbranch_scc1 k2_done
    s_load_dwordx4 s[4:7], s[0:1], 0
    s_load_dwordx2 s[8:9], s[0:1], 32
    s_load_dwordx2 s[10:11], s[0:1], 80
    v_lshrrev_b32 v2, 6, v0
    s_nop 0
    v_readfirstlane_b32 s28, v2
    s_cmp_ge_u32 s2, 240
    s_cbranch_scc1 k2_wt
    s_cmp_ge_u32 s2, 208
    s_cbranch_scc1 k2_kv
    s_cmp_ge_u32 s2, 176
    s_cbranch_scc1 k2_ln
    s_and_b32 s33, s2, 7
    s_lshr_b32 s34, s2, 3
    s_lshl_b32 s24, s33, 1
    s_cmp_ge_u32 s34, 11
    s_cselect_b32 s33, 1, 0
    s_cselect_b32 s25, 11, 0
    s_add_u32 s24, s24, s33
    s_sub_u32 s25, s34, s25
    s_lshr_b32 s29, s28, 2
    s_and_b32 s30, s28, 3
    s_waitcnt lgkmcnt(0)
    ''')
    srd(A, 12, 4, 2048 * 1280)
    srd(A, 20, 10, WS_END)
    A('''
    s_movk_i32 s26, 3840
    s_mov_b32 s18, 2457600
    s_cmp_lt_u32 s25, 5
    s_cselect_b32 s16, s6, s8
    s_cselect_b32 s17, s7, s9
    s_cselect_b32 s26, s26, 3072
    s_cselect_b32 s18, s18, 1966080
    s_cselect_b32 s33, 0, -1280
    s_lshl_b32 s27, s25, 8
    s_add_i32 s27, s27, s33
    s_and_b32 s17, s17, 0xffff
    s_mov_b32 s19, 0x00020000
    ''')
    g1_lane_setup(A)
    g1_mainloop(A, swapped=True)
    A(f'''
    s_lshl_b32 s33, s28, 7
    s_add_u32 s33, s33, {G1_CS}
    v_lshlrev_b32 v{T0+4}, 2, v2
    v_add_u32 v{T0+4}, s33, v{T0+4}
    ds_write_b32 v{T0+4}, v{CS}
    v_lshlrev_b32 v{T0+4}, 4, v3
    v_add_u32 v{T0+4}, s33, v{T0+4}
    s_lshl_b32 s33, s29, 6
    v_add_u32 v{T0+6}, s33, v2
    v_lshlrev_b32 v{T0+6}, 2, v{T0+6}
    v_add_u32 v{T0+6}, {G1_MB}, v{T0+6}
    s_movk_i32 s34, 1280
    s_cmp_lt_u32 s25, 5
    s_cselect_b32 s34, s34, 1536
    v_add_u32 v{T0+5}, s33, v2
    v_mul_lo_u32 v{T0+5}, v{T0+5}, s34
    s_lshl_b32 s33, s30, 6
    v_lshlrev_b32 v{T0+7}, 4, v3
    v_add_u32 v{T0+7}, s33, v{T0+7}
    v_add_u32 v{T0+5}, v{T0+5}, v{T0+7}
    s_lshl_b32 s33, s34, 5
    v_add_u32 v{T0+7}, s33, v{T0+5}
    s_lshl_b32 s33, s34, 7
    s_mul_i32 s39, s33, s24
    s_add_u32 s39, s39, s27
    s_mov_b32 s33, {PQ}
    s_cmp_lt_u32 s25, 5
    s_cselect_b32 s33, s33, {Z1}
    s_add_u32 s39, s39, s33
    s_waitcnt lgkmcnt(0)
    s_barrier
    s_cmp_lt_u32 s25, 5
    s_cbranch_scc1 k2_phi
    ''')
    A.reset_counters()
    k2_epilogue(A, 'gelu')
    A('s_endpgm')
    A.label('k2_phi')
    A('s_nop 4')
    A.reset_counters()
    k2_epilogue(A, 'phi')
    A('s_endpgm')
    gen_k2_ln(A)
    gen_k2_kv(A)
    gen_k2_wt(A)
    A.label('k2_done')
    A('s_endpgm')

def lane_reduce8(A, regs, tmp):
    for r in regs:
        A(f'v_add_f32_dpp v{r}, v{r}, v{r} row_ror:8 row_mask:0xf bank_mask:0xf')
    for r in regs:
        A(f'v_mov_b32 v{tmp}, v{r}')
        A(f'v_permlane16_swap_b32 v{r}, v{tmp}')
        A(f'v_add_f32 v{r}, v{r}, v{tmp}')
    for r in regs:
        A(f'v_mov_b32 v{tmp}, v{r}')
        A(f'v_permlane32_swap_b32 v{r}, v{tmp}')
        A(f'v_add_f32 v{r}, v{r}, v{tmp}')

def gen_k2_ln(A):
    A.label('k2_ln')
    A.reset_counters()
    X = 16; U = 64; S = 160; M = 168; R = 176; TM = 184; RD = 192
    A('''
    s_waitcnt lgkmcnt(0)
    s_sub_u32 s24, s2, 176
    ''')
    srd(A, 20, 10, WS_END)
    A(f'''
    v_and_b32 v1, 63, v0
    v_lshrrev_b32 v2, 3, v1
    v_and_b32 v3, 7, v1
    s_mul_i32 s33, s28, 96
    v_add_u32 v2, s33, v2
    v_lshlrev_b32 v2, 12, v2
    v_lshlrev_b32 v4, 4, v3
    v_add_u32 v2, v2, v4
    s_lshl_b32 s33, s24, 7
    v_add_u32 v2, s33, v2
    ''')
    for it in range(12):
        A(f's_mov_b32 s34, {1280*4096 + 32768*it}')
        A.vm(('x', it), f'buffer_load_dwordx4 {vr(X+4*it)}, v2, s[20:23], s34 offen')
    for e in range(8):
        A(f'v_mov_b32 v{S+e}, 0')
    A(f'''
    v_lshlrev_b32 v5, 5, v3
    s_lshl_b32 s33, s28, 8
    v_add_u32 v6, s33, v5
    ''')
    for it in range(12):
        A.wait_vm(('x', it))
        for d in range(4):
            A(f'v_lshlrev_b32 v{U+8*it+2*d}, 16, v{X+4*it+d}')
            A(f'v_and_b32 v{U+8*it+2*d+1}, 0xffff0000, v{X+4*it+d}')
        for e in range(8):
            A(f'v_add_f32 v{S+e}, v{S+e}, v{U+8*it+e}')
    def xwave(base_off, dst):
        lane_reduce8(A, [S + e for e in range(8)], TM)
        A(f'ds_write_b128 v6, {vr(S)} offset:{base_off}')
        A(f'ds_write_b128 v6, {vr(S+4)} offset:{base_off+16}')
        A('s_waitcnt lgkmcnt(0)')
        A('s_barrier')
        for w in range(8):
            A(f'ds_read_b128 {vr(RD+8*w)}, v5 offset:{base_off+256*w}')
            A(f'ds_read_b128 {vr(RD+8*w+4)}, v5 offset:{base_off+256*w+16}')
        A('s_waitcnt lgkmcnt(0)')
        for e in range(8):
            A(f'v_add_f32 v{dst+e}, v{RD+e}, v{RD+8+e}')
        for w in range(2, 8):
            for e in range(8):
                A(f'v_add_f32 v{dst+e}, v{dst+e}, v{RD+8*w+e}')
        for e in range(8):
            A(f'v_mul_f32 v{dst+e}, {f32(1/768)}, v{dst+e}')
    xwave(0, M)
    for e in range(8):
        A(f'v_mov_b32 v{S+e}, 0')
    for it in range(12):
        for e in range(8):
            A(f'v_sub_f32 v{TM+e}, v{U+8*it+e}, v{M+e}')
        for e in range(8):
            A(f'v_fmac_f32 v{S+e}, v{TM+e}, v{TM+e}')
    xwave(4096, R)
    for e in range(8):
        rnd_pair(A, TM, M + e, R + e)
    for e in range(8):
        A(f'v_add_f32 v{R+e}, {f32(1e-5)}, v{R+e}')
    for e in range(0, 8, 2):
        rnd_pair(A, TM, R + e, R + e + 1)
    for e in range(8):
        A(f'v_sqrt_f32 v{R+e}, v{R+e}')
    for e in range(0, 8, 2):
        rnd_pair(A, TM, R + e, R + e + 1)
    for e in range(8):
        A(f'v_rcp_f32 v{R+e}, v{R+e}')
    for it in range(12):
        for e in range(8):
            A(f'v_sub_f32 v{U+8*it+e}, v{U+8*it+e}, v{M+e}')
        for e in range(0, 8, 2):
            rnd_pair(A, TM + e // 2, U + 8 * it + e, U + 8 * it + e + 1)
        for e in range(8):
            A(f'v_mul_f32 v{U+8*it+e}, v{U+8*it+e}, v{R+e}')
        for d in range(4):
            A(f'v_cvt_pk_bf16_f32 v{X+4*it+d}, v{U+8*it+2*d}, v{U+8*it+2*d+1}')
        A(f's_mov_b32 s34, {Z2NT + 32768*it}')
        A(f'buffer_store_dwordx4 {vr(X+4*it)}, v2, s[20:23], s34 offen')
    A('s_endpgm')

def gen_k2_kv(A):
    A.label('k2_kv')
    A.reset_counters()
    AF = 16; BF = 80; KVA = 144; ZA = 160; ON = 176; TM = 180
    A('''
    s_waitcnt lgkmcnt(0)
    s_sub_u32 s24, s2, 208
    ''')
    srd(A, 20, 10, WS_END)
    A(f'''
    v_and_b32 v1, 63, v0
    v_and_b32 v2, 31, v1
    v_lshrrev_b32 v3, 5, v1
    s_mul_i32 s33, s24, 20
    v_add_u32 v4, s33, v2
    v_lshlrev_b32 v4, 12, v4
    v_lshlrev_b32 v5, 4, v3
    v_add_u32 v4, v4, v5
    s_lshl_b32 s33, s28, 9
    v_add_u32 v4, s33, v4
    s_mov_b32 s34, {640*4096}
    ''')
    for q in range(16):
        A.vm(('f', q), f'buffer_load_dwordx4 {vr(AF+4*q)}, v4, s[20:23], 0 offen offset:{32*q}')
        A.vm(('f', q), f'buffer_load_dwordx4 {vr(BF+4*q)}, v4, s[20:23], s34 offen offset:{32*q}')
    for i in range(32):
        A(f'v_mov_b32 v{KVA+i}, 0')
    for i in range(4):
        A(f'v_mov_b32 v{ON+i}, 0x3f803f80')
    for q in range(16):
        A.wait_vm(('f', q))
        A(f'v_mfma_f32_32x32x16_bf16 {vr(KVA,16)}, {vr(AF+4*q)}, {vr(BF+4*q)}, {vr(KVA,16)}')
        A(f'v_mfma_f32_32x32x16_bf16 {vr(ZA,16)}, {vr(AF+4*q)}, {vr(ON)}, {vr(ZA,16)}')
    A(f'''
    s_lshl_b32 s33, s28, 12
    v_lshlrev_b32 v6, 7, v2
    v_add_u32 v6, v6, v5
    v_add_u32 v6, s33, v6
    s_lshl_b32 s33, s28, 7
    v_add_u32 v7, s33, v5
    ''')
    for g in range(4):
        A(f'ds_write_b128 v6, {vr(KVA+4*g)} offset:{32*g}')
        A(f'ds_write_b128 v7, {vr(ZA+4*g)} offset:{32768+32*g}')
    A('''
    s_waitcnt lgkmcnt(0)
    s_barrier
    v_lshlrev_b32 v8, 3, v0
    v_and_b32 v9, 15, v0
    v_lshlrev_b32 v10, 3, v9
    ''')
    for w in range(8):
        A(f'ds_read_b64 {vr(AF+2*w,2)}, v8 offset:{4096*w}')
        A(f'ds_read_b64 {vr(BF+2*w,2)}, v10 offset:{32768+128*w}')
    A('s_waitcnt lgkmcnt(0)')
    for base in (AF, BF):
        for w in range(1, 8):
            A(f'v_add_f32 v{base}, v{base}, v{base+2*w}')
            A(f'v_add_f32 v{base+1}, v{base+1}, v{base+2*w+1}')
    A(f'''
    v_cvt_pk_bf16_f32 v{TM}, v{AF}, v{AF+1}
    v_cvt_pk_bf16_f32 v{TM+1}, v{BF}, v{BF+1}
    v_cmp_gt_u32 vcc, 10, v9
    s_nop 1
    v_cndmask_b32 v{TM}, 0, v{TM}, vcc
    v_cndmask_b32 v{TM+1}, 0, v{TM+1}, vcc
    v_lshlrev_b32 v11, 2, v0
    s_lshl_b32 s33, s24, 11
    s_add_u32 s33, s33, {KVT}
    buffer_store_dword v{TM}, v11, s[20:23], s33 offen
    v_cmp_gt_u32 vcc, 16, v0
    v_mov_b32 v12, 0x7ffffff0
    s_nop 0
    v_cndmask_b32 v11, v12, v11, vcc
    s_lshl_b32 s33, s24, 6
    s_add_u32 s33, s33, {ZP}
    buffer_store_dword v{TM+1}, v11, s[20:23], s33 offen
    s_endpgm
    ''')

def gen_k2_wt(A):
    A.label('k2_wt')
    A.reset_counters()
    A('''
    s_waitcnt lgkmcnt(0)
    s_load_dwordx2 s[4:5], s[0:1], 16
    s_load_dwordx2 s[6:7], s[0:1], 56
    s_sub_u32 s24, s2, 240
    s_movk_i32 s26, 1280
    s_mov_b32 s27, 0
    v_and_b32 v1, 63, v0
    v_and_b32 v2, 31, v1
    v_lshrrev_b32 v3, 5, v1
    s_and_b32 s30, s28, 3
    s_lshr_b32 s29, s28, 2
    s_waitcnt lgkmcnt(0)
    ''')
    srd(A, 20, 10, WS_END)
    g1_dma_b_setup(A)
    A('''
    v_and_b32 v5, 15, v1
    v_lshrrev_b32 v5, 2, v5
    v_and_b32 v6, 3, v1
    v_lshlrev_b32 v7, 3, v3
    v_add_u32 v7, v7, v5
    v_lshlrev_b32 v7, 8, v7
    v_xor_b32 v8, s30, v5
    v_lshlrev_b32 v8, 6, v8
    v_add_u32 v7, v7, v8
    v_lshrrev_b32 v8, 4, v1
    v_and_b32 v8, 1, v8
    v_lshlrev_b32 v8, 5, v8
    v_add_u32 v7, v7, v8
    v_lshlrev_b32 v6, 3, v6
    v_add_u32 v7, v7, v6
    s_lshl_b32 s33, s29, 13
    v_add_u32 v7, s33, v7
    s_lshl_b32 s35, s28, 11
    s_lshl_b32 s33, s30, 5
    v_add_u32 v9, s33, v2
    s_movk_i32 s33, 2816
    v_mul_lo_u32 v9, v9, s33
    v_lshlrev_b32 v10, 4, v3
    v_add_u32 v9, v9, v10
    s_lshl_b32 s33, s29, 6
    v_add_u32 v9, s33, v9
    s_mov_b32 s18, 983040
    s_mov_b32 s19, 0x00020000
    ''')
    def tile_scalars(q):
        A(f'''
        s_add_u32 s40, s24, {16*q}
        s_mul_i32 s41, s40, 52429
        s_lshr_b32 s41, s41, 18
        s_mul_i32 s42, s41, 5
        s_sub_u32 s42, s40, s42
        ''')
    for q in range(7):
        if q == 6:
            A('s_cmp_ge_u32 s24, 14')
            A('s_cbranch_scc1 k2_wt_issued')
        tile_scalars(q)
        A(f'''
        s_cmp_lt_u32 s41, 10
        s_cselect_b32 s16, s4, s6
        s_cselect_b32 s17, s5, s7
        s_cselect_b32 s43, 0, 10
        s_and_b32 s17, s17, 0xffff
        s_sub_u32 s43, s41, s43
        s_mul_i32 s43, s43, {64*1280}
        s_lshl_b32 s44, s42, 8
        s_add_u32 s43, s43, s44
        s_add_u32 m0, s35, {16384*q}
        s_nop 0
        buffer_load_dwordx4 v{VOB}, s[16:19], s43 offen lds
        buffer_load_dwordx4 v{VOB+1}, s[16:19], s43 offen offset:1024 lds
        ''')
    A.label('k2_wt_issued')
    A('''
    s_waitcnt vmcnt(0)
    s_barrier
    ''')
    for q in range(7):
        if q == 6:
            A('s_cmp_ge_u32 s24, 14')
            A('s_cbranch_scc1 k2_wt_done')
        tile_scalars(q)
        base = 16 + 8 * q
        A(f'v_add_u32 v11, {16384*q}, v7')
        for kk in range(2):
            A(f'ds_read_b64_tr_b16 {vr(base+4*kk,2)}, v11 offset:{kk*4096}')
            A(f'ds_read_b64_tr_b16 {vr(base+4*kk+2,2)}, v11 offset:{kk*4096+1024}')
        A(f'''
        s_mul_i32 s43, s42, {128*2816}
        s_lshl_b32 s44, s41, 7
        s_add_u32 s43, s43, s44
        s_add_u32 s43, s43, {WT}
        s_waitcnt lgkmcnt(0)
        buffer_store_dwordx4 {vr(base)}, v9, s[20:23], s43 offen
        buffer_store_dwordx4 {vr(base+4)}, v9, s[20:23], s43 offen offset:32
        ''')
    A.label('k2_wt_done')
    A('s_endpgm')

K3_LDS = 98304
def k3_stage(s):
    return ('a', 96 + 40 * s) if s < 4 else ('v', 128 + 40 * (s - 4))
def rr(kb, off, n=4):
    k, b = kb
    return f'{k}[{b+off}:{b+off+n-1}]'

def gen_k3(A):
    A.label('k3_kernel')
    A.reset_counters()
    A('''
    s_cmp_ge_u32 s2, 256
    s_cbranch_scc1 k3_done
    s_load_dwordx4 s[4:7], s[0:1], 40
    s_load_dwordx2 s[10:11], s[0:1], 80
    v_lshrrev_b32 v2, 6, v0
    v_and_b32 v1, 63, v0
    v_readfirstlane_b32 s28, v2
    v_and_b32 v2, 15, v1
    v_lshrrev_b32 v3, 4, v1
    s_and_b32 s33, s2, 7
    s_lshr_b32 s34, s2, 3
    s_lshr_b32 s24, s33, 1
    s_lshl_b32 s24, s24, 3
    s_lshr_b32 s25, s34, 2
    s_add_u32 s24, s24, s25
    s_and_b32 s25, s33, 1
    s_lshl_b32 s25, s25, 2
    s_and_b32 s34, s34, 3
    s_add_u32 s25, s25, s34
    s_waitcnt lgkmcnt(0)
    ''')
    srd(A, 12, 4, 2048 * 4096)
    srd(A, 16, 6, 4096)
    srd(A, 20, 10, WS_END)
    for j in range(6):
        A(f's_mov_b32 s{44+j}, {65536*j}')
    A(f'''
    s_lshr_b32 s33, s2, 1
    s_lshl_b32 s33, s33, 4
    v_add_u32 v4, s33, v2
    s_movk_i32 s34, 1280
    v_mul_lo_u32 v5, v4, s34
    v_lshlrev_b32 v6, 4, v3
    v_add_u32 v5, v5, v6
    s_and_b32 s35, s2, 1
    s_lshl_b32 s35, s35, 4
    s_lshl_b32 s34, s28, 2
    s_add_u32 s35, s35, s34
    s_mul_i32 s36, s35, 40
    s_add_u32 s37, s36, {PQ}
    v_lshlrev_b32 v7, 6, v2
    v_add_u32 v7, v7, v6
    s_lshl_b32 s38, s35, 11
    s_add_u32 s38, s38, {KVT}
    s_lshl_b32 s39, s35, 6
    s_add_u32 s39, s39, {ZP}
    ''')
    OF = 16
    for q in range(4):
        b = OF + 16 * q
        A.vm('o', f'buffer_load_dwordx4 {vr(b)}, v5, s[20:23], s37 offen offset:{40*q}')
        A.vm('o', f'buffer_load_dwordx4 {vr(b+4)}, v7, s[20:23], s38 offen offset:{2048*q % 4096}') if q < 2 else None
        A.vm('o', f'buffer_load_dwordx4 {vr(b+8)}, v7, s[20:23], s38 offen offset:{2048*q % 4096 + 1024}') if q < 2 else None
        if q == 1:
            A('s_add_u32 s38, s38, 4096')
        if q >= 2:
            A.vm('o', f'buffer_load_dwordx4 {vr(b+4)}, v7, s[20:23], s38 offen offset:{2048*(q-2)}')
            A.vm('o', f'buffer_load_dwordx4 {vr(b+8)}, v7, s[20:23], s38 offen offset:{2048*(q-2)+1024}')
        A.vm('o', f'buffer_load_dwordx4 {vr(b+12)}, v6, s[20:23], s39 offen offset:{64*q}')
    A(f'''
    s_mul_i32 s33, s25, 96
    v_add_u32 v8, s33, v2
    v_lshlrev_b32 v8, 12, v8
    s_lshl_b32 s33, s28, 10
    s_add_u32 s34, s33, {Z2NT}
    v_add_u32 v8, s34, v8
    v_add_u32 v8, v8, v6
    s_lshl_b32 s34, s24, 6
    v_add_u32 v9, s34, v2
    v_lshlrev_b32 v9, 12, v9
    v_add_u32 v9, s33, v9
    v_add_u32 v9, v9, v6
    ''')
    def loads(step):
        sb = k3_stage(step % 6)
        for j in range(6):
            A.vm(('m', step), f'buffer_load_dwordx4 {rr(sb, 4*j)}, v8, s[20:23], s{44+j} offen offset:{64*step}')
        for i in range(4):
            A.vm(('m', step), f'buffer_load_dwordx4 {rr(sb, 24+4*i)}, v9, s[12:15], s{44+i} offen offset:{64*step}')
    for s in range(4):
        loads(s)
    for i in range(96):
        A(f'v_accvgpr_write_b32 a{i}, 0')
    A.wait_vm('o')
    OD = 80
    for q in range(4):
        b = OF + 16 * q; d = OD + 12 * q
        A(f'v_mfma_f32_16x16x32_bf16 {vr(d)}, {vr(b+4)}, {vr(b)}, 0')
        A(f'v_mfma_f32_16x16x32_bf16 {vr(d+4)}, {vr(b+8)}, {vr(b)}, 0')
        A(f'v_mfma_f32_16x16x32_bf16 {vr(d+8)}, {vr(b+12)}, {vr(b)}, 0')
    A(f'''
    s_movk_i32 s34, 2816
    v_mul_lo_u32 v10, v4, s34
    v_lshlrev_b32 v11, 3, v3
    v_add_u32 v10, v10, v11
    v_cmp_eq_u32 vcc, 0, v3
    v_mov_b32 v12, 0x7ffffff0
    s_add_u32 s36, s36, {OH}
    v_cndmask_b32 v11, v12, v10, vcc
    ''')
    for q in range(4):
        d = OD + 12 * q; t = OF + 4 * q
        A(f'v_cvt_pk_bf16_f32 v{t}, v{d+8}, v{d+8}')
        A(f'v_lshlrev_b32 v{d+8}, 16, v{t}')
        A(f'v_add_f32 v{d+8}, {f32(1e-6)}, v{d+8}')
        A(f'v_cvt_pk_bf16_f32 v{t}, v{d+8}, v{d+8}')
        A(f'v_lshlrev_b32 v{d+8}, 16, v{t}')
        A(f'v_rcp_f32 v{d+8}, v{d+8}')
        for k in range(0, 8, 2):
            rnd_pair(A, t, d + k, d + k + 1)
        for k in range(8):
            A(f'v_mul_f32 v{d+k}, v{d+k}, v{d+8}')
        for k in range(4):
            A(f'v_cvt_pk_bf16_f32 v{t+k}, v{d+2*k}, v{d+2*k+1}')
        A.vm('os', f'buffer_store_dwordx2 {vr(t,2)}, v10, s[20:23], s36 offen offset:{40*q}')
        A.vm('os', f'buffer_store_dwordx2 {vr(t+2,2)}, v11, s[20:23], s36 offen offset:{40*q+32}')
    for s in range(4, 6):
        loads(s)
    Z1R = 96; BS = 108
    A(f'''
    s_lshl_b32 s33, s24, 6
    s_lshl_b32 s34, s28, 4
    s_add_u32 s33, s33, s34
    v_add_u32 v13, s33, v2
    s_movk_i32 s34, 1536
    v_mul_lo_u32 v14, v13, s34
    v_lshlrev_b32 v11, 3, v3
    v_add_u32 v14, v14, v11
    s_mul_i32 s40, s25, 192
    s_add_u32 s41, s40, {Z1}
    s_movk_i32 s34, 2816
    v_mul_lo_u32 v15, v13, s34
    v_add_u32 v15, v15, v11
    s_add_u32 s42, s40, {OH + 1280}
    v_lshlrev_b32 v13, 1, v13
    ''')
    for step in range(16):
        sb = k3_stage(step % 6)
        A.wait_vm(('m', step))
        for i in range(4):
            for j in range(6):
                acc = (j * 4 + i) * 4
                A(f'v_mfma_f32_16x16x32_bf16 a[{acc}:{acc+3}], {rr(sb,4*j)}, {rr(sb,24+4*i)}, a[{acc}:{acc+3}]')
        if step + 6 < 16:
            loads(step + 6)
        if step == 9:
            for j in range(6):
                A.vm('z1', f'buffer_load_dwordx2 {vr(Z1R+2*j,2)}, v14, s[20:23], s41 offen offset:{32*j}')
            A.vm('z1', f'buffer_load_ushort v{BS}, v13, s[16:19], 0 offen')
    A(f'''
    v_lshlrev_b32 v4, 4, v1
    s_mul_i32 s33, s28, 24576
    v_add_u32 v5, s33, v4
    s_lshl_b32 s33, s28, 10
    v_add_u32 v6, s33, v4
    v_add_u32 v7, 49152, v6
    ''')
    for tl in range(24):
        A(f'ds_write_b128 v5, a[{4*tl}:{4*tl+3}] offset:{1024*tl}')
    A('s_waitcnt lgkmcnt(0)')
    A('s_barrier')
    RB = 128
    for src in range(4):
        for j in range(6):
            A(f'ds_read_b128 {vr(RB+24*src+4*j)}, v{6 if src < 2 else 7} offset:{(src&1)*24576 + 4096*j}')
    A('s_waitcnt lgkmcnt(0)')
    for src in range(1, 4):
        for k in range(24):
            A(f'v_add_f32 v{RB+k}, v{RB+k}, v{RB+24*src+k}')
    A.wait_vm('z1')
    A(f'v_lshlrev_b32 v{BS}, 16, v{BS}')
    TP = 16
    for k in range(0, 24, 2):
        rnd_pair(A, TP + k // 2, RB + k, RB + k + 1)
    for k in range(24):
        A(f'v_add_f32 v{RB+k}, v{RB+k}, v{BS}')
    for k in range(0, 24, 2):
        rnd_pair(A, TP + k // 2, RB + k, RB + k + 1)
    for k in range(12):
        A(f'v_lshlrev_b32 v{TP+2*k}, 16, v{Z1R+k}')
        A(f'v_and_b32 v{TP+2*k+1}, 0xffff0000, v{Z1R+k}')
    for k in range(24):
        A(f'v_mul_f32 v{RB+k}, v{RB+k}, v{TP+k}')
    for k in range(12):
        A(f'v_cvt_pk_bf16_f32 v{Z1R+k}, v{RB+2*k}, v{RB+2*k+1}')
    for j in range(6):
        A(f'buffer_store_dwordx2 {vr(Z1R+2*j,2)}, v15, s[20:23], s42 offen offset:{32*j}')
    A.label('k3_done')
    A('s_endpgm')

K4_LDS = 163840
def k4_stage(s):
    return ('a', 160 + 36 * s) if s < 2 else ('v', 100 + 36 * (s - 2))

def gen_k4(A):
    A.label('k4_kernel')
    A.reset_counters()
    A('''
    s_cmp_ge_u32 s2, 256
    s_cbranch_scc1 k4_done
    s_load_dwordx2 s[4:5], s[0:1], 0
    s_load_dwordx2 s[6:7], s[0:1], 64
    s_load_dwordx2 s[10:11], s[0:1], 80
    v_lshrrev_b32 v2, 6, v0
    v_and_b32 v1, 63, v0
    v_readfirstlane_b32 s28, v2
    v_and_b32 v2, 15, v1
    v_lshrrev_b32 v3, 4, v1
    s_and_b32 s33, s2, 7
    s_lshr_b32 s34, s2, 3
    s_lshr_b32 s24, s33, 1
    s_lshl_b32 s24, s24, 3
    s_lshr_b32 s25, s34, 2
    s_add_u32 s24, s24, s25
    s_and_b32 s25, s33, 1
    s_lshl_b32 s25, s25, 2
    s_and_b32 s34, s34, 3
    s_add_u32 s25, s25, s34
    s_waitcnt lgkmcnt(0)
    ''')
    srd(A, 12, 4, 2048 * 1280)
    srd(A, 16, 6, 2048 * 1280)
    srd(A, 20, 10, WS_END)
    for j in range(5):
        A(f's_mov_b32 s{44+j}, {45056*j}')
    A(f'''
    v_lshlrev_b32 v6, 4, v3
    s_movk_i32 s34, 2816
    s_mul_i32 s33, s25, 80
    v_add_u32 v8, s33, v2
    v_mul_lo_u32 v8, v8, s34
    v_add_u32 v8, v8, v6
    s_lshl_b32 s33, s24, 6
    v_add_u32 v9, s33, v2
    v_mul_lo_u32 v9, v9, s34
    v_add_u32 v9, v9, v6
    s_mul_i32 s33, s28, 384
    s_add_u32 s35, s33, {WT + 1280}
    v_add_u32 v10, s35, v8
    s_add_u32 s35, s33, {OH + 1280}
    v_add_u32 v11, s35, v9
    s_mul_i32 s33, s28, 320
    s_add_u32 s35, s33, {WT}
    v_add_u32 v8, s35, v8
    s_add_u32 s35, s33, {OH}
    v_add_u32 v9, s35, v9
    ''')
    NS = 6
    def loads(step):
        sb = k4_stage(step % NS)
        ph = 0 if step < 5 else 1
        ls = step if ph == 0 else step - 5
        va, vb = (8, 9) if ph == 0 else (10, 11)
        for j in range(5):
            A.vm(('m', step), f'buffer_load_dwordx4 {rr(sb, 4*j)}, v{va}, s[20:23], s{44+j} offen offset:{64*ls}')
        for i in range(4):
            A.vm(('m', step), f'buffer_load_dwordx4 {rr(sb, 20+4*i)}, v{vb}, s[20:23], s{44+i} offen offset:{64*ls}')
    for s in range(NS):
        loads(s)
    for i in range(160):
        A(f'v_accvgpr_write_b32 a{i}, 0')
    XR = 16
    A(f'''
    s_lshl_b32 s33, s24, 6
    s_lshl_b32 s34, s28, 4
    s_add_u32 s33, s33, s34
    v_add_u32 v13, s33, v2
    s_movk_i32 s34, 1280
    v_mul_lo_u32 v14, v13, s34
    v_lshlrev_b32 v12, 3, v3
    v_add_u32 v14, v14, v12
    s_mul_i32 s40, s25, 160
    ''')
    for step in range(11):
        sb = k4_stage(step % NS)
        ph = 0 if step < 5 else 1
        A.wait_vm(('m', step))
        for i in range(4):
            for j in range(5):
                acc = ph * 80 + (j * 4 + i) * 4
                A(f'v_mfma_f32_16x16x32_bf16 a[{acc}:{acc+3}], {rr(sb,4*j)}, {rr(sb,20+4*i)}, a[{acc}:{acc+3}]')
        if step + NS < 11:
            loads(step + NS)
        if step == 4:
            for j in range(5):
                A.vm('x', f'buffer_load_dwordx2 {vr(XR+2*j,2)}, v14, s[12:15], s40 offen offset:{32*j}')
    A(f'''
    v_lshlrev_b32 v4, 4, v1
    s_mul_i32 s33, s28, 20480
    v_add_u32 v5, s33, v4
    v_add_u32 v6, 81920, v5
    s_lshl_b32 s33, s28, 10
    v_add_u32 v7, s33, v4
    ''')
    for ph in range(2):
        for tl in range(20):
            A(f'ds_write_b128 v{5+ph}, a[{ph*80+4*tl}:{ph*80+4*tl+3}] offset:{1024*tl}')
    A('s_waitcnt lgkmcnt(0)')
    A('s_barrier')
    RB = 64
    for ph in range(2):
        for src in range(4):
            off = ph * 81920 + src * 20480
            A(f'v_add_u32 v{8+src}, {off}, v7')
        for src in range(4):
            for j in range(5):
                A(f'ds_read_b128 {vr(RB+80*ph+20*src+4*j)}, v{8+src} offset:{4096*j}')
        A('s_waitcnt lgkmcnt(0)')
        for src in range(1, 4):
            for k in range(20):
                A(f'v_add_f32 v{RB+80*ph+k}, v{RB+80*ph+k}, v{RB+80*ph+20*src+k}')
    A.wait_vm('x')
    TP = 32
    RA = RB; RBB = RB + 80
    for k in range(0, 20, 2):
        rnd_pair(A, TP + k // 2, RA + k, RA + k + 1)
    for k in range(0, 20, 2):
        rnd_pair(A, TP + k // 2, RBB + k, RBB + k + 1)
    for k in range(10):
        A(f'v_lshlrev_b32 v{TP+2*k}, 16, v{XR+k}')
        A(f'v_and_b32 v{TP+2*k+1}, 0xffff0000, v{XR+k}')
    for k in range(20):
        A(f'v_add_f32 v{RA+k}, v{TP+k}, v{RA+k}')
    for k in range(0, 20, 2):
        rnd_pair(A, TP + k // 2, RA + k, RA + k + 1)
    for k in range(20):
        A(f'v_add_f32 v{RA+k}, v{RA+k}, v{RBB+k}')
    for k in range(10):
        A(f'v_cvt_pk_bf16_f32 v{XR+k}, v{RA+2*k}, v{RA+2*k+1}')
    for j in range(5):
        A(f'buffer_store_dwordx2 {vr(XR+2*j,2)}, v14, s[16:19], s40 offen offset:{32*j}')
    A.label('k4_done')
    A('s_endpgm')

def kd(name, vgpr, accum, sgpr=64):
    return f'''
.amdhsa_kernel {name}
  .amdhsa_next_free_vgpr {vgpr}
  .amdhsa_next_free_sgpr {sgpr}
  .amdhsa_accum_offset {accum}
  .amdhsa_group_segment_fixed_size 0
  .amdhsa_kernarg_size 88
  .amdhsa_user_sgpr_count 2
  .amdhsa_user_sgpr_kernarg_segment_ptr 1
  .amdhsa_system_sgpr_workgroup_id_x 1
.end_amdhsa_kernel
'''

def main():
    hdr = open(f'cdna_kernels/{NAME}.s.ref').read().split('\n')
    hdr = [l for l in hdr if l.startswith(';') and '@launch' not in l]
    out = '\n'.join(hdr) + '\n'
    out += f'; @launch kernel=k1_kernel grid=(256,1,1) block=(512,1,1) lds={G1_LDS}\n'
    out += f'; @launch kernel=k2_kernel grid=(256,1,1) block=(512,1,1) lds={G1_LDS}\n'
    out += f'; @launch kernel=k3_kernel grid=(256,1,1) block=(256,1,1) lds={K3_LDS}\n'
    out += f'; @launch kernel=k4_kernel grid=(256,1,1) block=(256,1,1) lds={K4_LDS}\n'
    out += '.amdgcn_target "amdgcn-amd-amdhsa--gfx950"\n.text\n'
    for nm, fn in (('k1_kernel', gen_k1), ('k2_kernel', gen_k2), ('k3_kernel', gen_k3), ('k4_kernel', gen_k4)):
        A = Asm()
        fn(A)
        out += f'.globl {nm}\n.p2align 8\n.type {nm},@function\n'
        out += A.render()
    out += '.section .rodata,"a"\n.p2align 6\n'
    out += kd('k1_kernel', 256, 256)
    out += kd('k2_kernel', 256, 256)
    out += kd('k3_kernel', 512, 256)
    out += kd('k4_kernel', 512, 256)
    open(f'cdna_kernels/{NAME}.s', 'w').write(out)

if __name__ == '__main__':
    main()
```

```python
import re

TRANS = ('v_exp_f32', 'v_rcp_f32', 'v_sqrt_f32', 'v_rsq_f32', 'v_log_f32', 'v_sin_f32', 'v_cos_f32')

def _split_ops(s):
    out, depth, cur = [], 0, ''
    for ch in s:
        if ch in '[(':
            depth += 1
        elif ch in '])':
            depth -= 1
        if ch == ',' and depth == 0:
            out.append(cur.strip()); cur = ''
        else:
            cur += ch
    if cur.strip():
        out.append(cur.strip())
    return out

_REG = re.compile(r'^(?:-|\|)?(?:abs\()?([vas])(\d+|\[(\d+):(\d+)\])\)?\|?$')

def regs_of(op):
    op = op.strip()
    tok = op.split()[0] if op else ''
    if tok in ('vcc', 'exec', 'm0', 'scc'):
        return {tok}
    if tok in ('vcc_lo', 'vcc_hi'):
        return {'vcc'}
    m = _REG.match(tok)
    if not m:
        return set()
    k = m.group(1)
    if m.group(3) is not None:
        return {f'{k}{i}' for i in range(int(m.group(3)), int(m.group(4)) + 1)}
    return {f'{k}{m.group(2)}'}

class Ins:
    __slots__ = ('text', 'mn', 'kind', 'w', 'r', 'cond', 'states', 'srcc', 'passes', 'dpp', 'wide')

def parse(text, cond):
    I = Ins(); I.text = text; I.cond = cond; I.states = 1; I.srcc = set(); I.passes = 0; I.dpp = False; I.wide = False
    t = text.split(';')[0].strip()
    parts = t.split(None, 1)
    mn = parts[0]; I.mn = mn
    ops = _split_ops(parts[1]) if len(parts) > 1 else []
    R = lambda idxs: set().union(*[regs_of(ops[i]) for i in idxs if i < len(ops)]) if idxs else set()
    n = len(ops)
    I.w, I.r = set(), set()
    if mn.endswith(':'):
        I.kind = 'label'; I.states = 0
    elif mn == 's_nop':
        I.kind = 'nop'; I.states = int(ops[0], 0) + 1
    elif mn.startswith('v_mfma'):
        I.kind = 'mfma'; I.w = R([0]); I.r = R([1, 2, 3]); I.srcc = R([3])
        I.passes = 8 if '32x32x16' in mn else 4
    elif mn.startswith('v_'):
        I.kind = 'trans' if mn.split('_e32')[0] in TRANS else 'valu'
        I.dpp = ('dpp' in mn) or any(x in t for x in ('quad_perm', 'row_shr', 'row_ror', 'row_mirror', 'row_half_mirror', 'row_bcast', 'row_newbcast', 'row_shl'))
        if mn.startswith('v_permlane'):
            I.w = R([0, 1]); I.r = R([0, 1])
        elif mn.startswith('v_add_co') or mn.startswith('v_sub_co') or mn.startswith('v_addc_co') or mn.startswith('v_mad_u64'):
            I.w = R([0, 1]); I.r = R(range(2, n))
        elif mn.startswith('v_cmp'):
            I.w = R([0]); I.r = R(range(1, n))
        elif mn.startswith('v_fmac') or mn.startswith('v_dot2c') or mn.startswith('v_pk_fmac'):
            I.w = R([0]); I.r = R(range(0, n))
        else:
            I.w = R([0]); I.r = R(range(1, n))
        if mn.startswith('v_cndmask') and n == 3:
            I.r |= {'vcc'}
    elif mn.startswith('ds_'):
        I.kind = 'ds'
        if mn.startswith('ds_read') or mn.startswith('ds_bpermute') or mn.startswith('ds_permute') or mn.startswith('ds_swizzle'):
            I.w = R([0]); I.r = R(range(1, n))
        else:
            I.r = R(range(0, n))
    elif mn.startswith('buffer_') or mn.startswith('global_'):
        I.kind = 'vmem'
        if 'load' in mn:
            if re.search(r'\blds\b', t):
                I.r = R(range(0, n)) | {'m0'}; I.kind = 'vmem_lds'
            else:
                I.w = R([0]); I.r = R(range(1, n))
        else:
            I.r = R(range(0, n))
            I.wide = ('x4' in mn or 'x3' in mn)
    elif mn.startswith('s_'):
        I.kind = 'salu'
        if mn.startswith('s_cmp') or mn in ('s_waitcnt', 's_barrier', 's_endpgm', 's_setprio', 's_sleep') or mn.startswith('s_branch') or mn.startswith('s_cbranch'):
            I.r = R(range(0, n))
        elif mn.startswith('s_load'):
            I.kind = 'smem'; I.w = R([0]); I.r = R(range(1, n))
        else:
            I.w = R([0]); I.r = R(range(1, n))
            if 'saveexec' in mn:
                I.w |= {'exec'}
    else:
        I.kind = 'other'
    return I

class Asm:
    def __init__(self):
        self.items = []
        self.cond = False
        self.vmq = []
        self.ldq = []
    def raw(self, s):
        self.items.append(s)
    def __call__(self, text):
        for line in text.strip().split('\n'):
            line = line.strip()
            if not line or line.startswith(';'):
                continue
            self.items.append(parse(line, self.cond))
    def label(self, name):
        self.items.append(parse(name + ':', self.cond))
    def vm(self, tag, text):
        self(text); self.vmq.append(tag)
    def ld(self, tag, text):
        self(text); self.ldq.append(tag)
    def _cnt(self, q, tag):
        idx = [i for i, t in enumerate(q) if t == tag]
        if not idx:
            return None
        return len(q) - 1 - idx[-1]
    def wait_vm(self, tag):
        n = self._cnt(self.vmq, tag)
        if n is None:
            return
        assert n <= 63, n
        self(f's_waitcnt vmcnt({n})')
        self.vmq = self.vmq[len(self.vmq) - n:] if n else []
    def wait_ld(self, tag):
        n = self._cnt(self.ldq, tag)
        if n is None:
            return
        n = min(n, 15)
        self(f's_waitcnt lgkmcnt({n})')
        self.ldq = self.ldq[len(self.ldq) - n:] if n else []
    def wait_ld_all(self):
        self('s_waitcnt lgkmcnt(0)'); self.ldq = []
    def wait_vm_all(self):
        self('s_waitcnt vmcnt(0)'); self.vmq = []
    def reset_counters(self):
        self.vmq = []; self.ldq = []
    def render(self):
        out = []
        hist = []
        pf = 0; pu = 0
        def need(I):
            req = 0
            for (P, f, u) in reversed(hist):
                d = (pf - f) if I.cond else (pu - u)
                if pf - f > 24:
                    break
                k = 0
                Pv = P.kind in ('valu', 'trans')
                Iv = I.kind in ('valu', 'trans')
                if Pv and I.kind == 'mfma' and (P.w & I.r):
                    k = max(k, 2)
                if P.kind == 'mfma':
                    big = 12 if P.passes == 8 else 8
                    if I.kind == 'mfma':
                        if (P.w & (I.r - I.srcc)):
                            k = max(k, big)
                        if (P.w & I.srcc) and not (P.w == I.srcc and P.passes == I.passes):
                            k = max(k, 10 if P.passes == 8 else 6)
                    elif I.kind in ('valu', 'trans', 'ds', 'vmem', 'vmem_lds'):
                        if P.w & (I.r | I.w):
                            k = max(k, big)
                    if Iv and (P.srcc & I.w):
                        k = max(k, 7 if P.passes == 8 else 3)
                if P.mn.startswith('v_dot') and (P.w & (I.r | I.w)):
                    if not (I.mn == P.mn and I.w == P.w and len(I.r & P.w) == 1 and I.text.split(';')[0].strip().endswith(list(P.w)[0])
                            and I.text.count(list(P.w)[0] + ',') == 1):
                        k = max(k, 3)
                if Pv:
                    sw = {x for x in P.w if x[0] == 's' or x == 'vcc'}
                    if sw:
                        if Iv and (sw & I.r):
                            k = max(k, 2)
                        if I.kind in ('vmem', 'vmem_lds') and (sw & I.r):
                            k = max(k, 5)
                        if I.kind in ('salu', 'smem') and (sw & I.r):
                            k = max(k, 2)
                    if P.kind == 'trans' and I.kind in ('valu', 'mfma') and (P.w & I.r):
                        k = max(k, 1)
                    if Iv and (P.w & I.r):
                        if I.dpp or I.mn.startswith('v_permlane'):
                            k = max(k, 2)
                        if I.mn.startswith('v_readfirstlane') or I.mn.startswith('v_readlane'):
                            k = max(k, 1)
                    if 'exec' in P.w:
                        k = max(k, 5)
                if P.kind == 'salu' and 'm0' in P.w and I.kind == 'vmem_lds':
                    k = max(k, 1)
                if P.kind == 'vmem' and P.wide and (P.r & I.w):
                    k = max(k, 2)
                if k - d > req:
                    req = k - d
            return req
        for it in self.items:
            if isinstance(it, str):
                out.append(it); continue
            if it.kind == 'label':
                out.append(it.text); continue
            r = need(it)
            if r > 0:
                nop = parse(f's_nop {r - 1}', it.cond)
                out.append('    ' + nop.text + '    ; hazard pad')
                pf += r
                if not it.cond:
                    pu += r
            out.append('    ' + it.text)
            pf += it.states
            if not it.cond:
                pu += it.states
            hist.append((it, pf, pu))
            if len(hist) > 64:
                hist = hist[-48:]
        return '\n'.join(out) + '\n'
```

```python
import sys, struct
sys.path.insert(0, 'gen')
from dsl import Asm

NAME = 'parallel_sum__linear_attn_block__mixer_gmlp__prompt'

T1   = 0
PQ   = 8388608
Z1   = PQ + 2621440
Z2NT = Z1 + 3145728
KVT  = Z2NT + 3145728
ZP   = KVT + 65536
WT   = KVT + 131072
OH   = 19398656
WS_END = OH + 5767168

def f32(x):
    return '0x%08x' % struct.unpack('<I', struct.pack('<f', x))[0]

LOG2E = 1.4426950408889634
KBETA = 0.7978845608028654
KKAPPA = 0.044715

def srd(A, d, b, nbytes):
    A(f's_mov_b32 s{d}, s{b}')
    A(f's_and_b32 s{d+1}, s{b+1}, 0xffff')
    A(f's_mov_b32 s{d+2}, {nbytes}')
    A(f's_mov_b32 s{d+3}, 0x00020000')

import os
STAMP = os.environ.get('STAMP', '')
STAMP_BASE = 32 << 20
class Stamps:
    def __init__(self, A, on):
        self.A = A; self.on = on; self.n = 0
    def __call__(self):
        if not self.on: return
        A = self.A
        A(f's_memtime s[{64+2*self.n}:{65+2*self.n}]')
        A('s_waitcnt lgkmcnt(0)')
        A.ldq = []
        self.n += 1
    def flush(self, nwaves, kidx):
        if not self.on: return
        A = self.A
        A('s_waitcnt vmcnt(0)')
        self()
        A(f'''
        s_mov_b32 s60, s10
        s_and_b32 s61, s11, 0xffff
        s_mov_b32 s62, {64<<20}
        s_mov_b32 s63, 0x00020000
        s_lshl_b32 s33, s2, 3
        s_add_u32 s33, s33, s28
        s_lshl_b32 s33, s33, 7
        s_add_u32 s33, s33, {STAMP_BASE + (kidx<<20)}
        v_mov_b32 v4, 0
        ''')
        for i in range(self.n):
            A(f'v_mov_b32 v6, s{64+2*i}')
            A(f'v_mov_b32 v7, s{65+2*i}')
            A(f'buffer_store_dwordx2 v[6:7], v4, s[60:63], s33 offen offset:{8*i}')
            A('s_nop 1')

def rnd_pair(A, p, a, b):
    A(f'v_cvt_pk_bf16_f32 v{p}, v{a}, v{b}')
    A(f'v_lshlrev_b32 v{a}, 16, v{p}')
    A(f'v_and_b32 v{b}, 0xffff0000, v{p}')

G1_STAGE = 32768
G1_MB = 4 * G1_STAGE
G1_RI = G1_MB + 512
G1_CS = G1_RI + 512
G1_LDS = G1_CS + 1024

ACC = 32
FX = lambda b, ks, i: 64 + 48 * b + 12 * ks + 4 * i
FW = lambda b, ks: 64 + 48 * b + 12 * ks + 8
ST = lambda b: 160 + 8 * b
VA = lambda s, ks: 176 + 4 * s + ks
VB = lambda s: 184 + s
VS = lambda s: 186 + s
VOA = 188; VOB = 190
RS, RQ, CS, ONES = 192, 193, 194, 195
T0 = 64

def vr(b, n=4):
    return f'v[{b}:{b+n-1}]'

def g1_lane_setup(A):
    A('''
    v_and_b32 v1, 63, v0
    v_and_b32 v2, 31, v1
    v_lshrrev_b32 v3, 5, v1
    v_lshrrev_b32 v4, 1, v1
    v_and_b32 v4, 7, v4
    v_xor_b32 v4, v3, v4
    v_lshlrev_b32 v4, 4, v4
    v_lshlrev_b32 v5, 7, v2
    v_add_u32 v4, v4, v5
    s_lshl_b32 s33, s29, 13
    v_add_u32 v4, s33, v4
    ''')
    for ks in range(4):
        A(f'v_xor_b32 v{VA(0,ks)}, {ks<<5}, v4')
        A(f'v_add_u32 v{VA(1,ks)}, 0x10000, v{VA(0,ks)}')
    A('''
    v_and_b32 v5, 15, v1
    v_lshrrev_b32 v5, 2, v5
    v_and_b32 v6, 3, v1
    v_lshlrev_b32 v7, 3, v3
    v_add_u32 v7, v7, v5
    v_lshlrev_b32 v7, 8, v7
    v_xor_b32 v8, s30, v5
    v_lshlrev_b32 v8, 6, v8
    v_add_u32 v7, v7, v8
    v_lshrrev_b32 v8, 4, v1
    v_and_b32 v8, 1, v8
    v_lshlrev_b32 v8, 5, v8
    v_add_u32 v7, v7, v8
    v_lshlrev_b32 v6, 3, v6
    v_add_u32 v7, v7, v6
    ''')
    A(f'v_add_u32 v{VB(0)}, 0x4000, v7')
    A(f'v_add_u32 v{VB(1)}, 0x14000, v7')
    A('''
    v_lshrrev_b32 v5, 2, v1
    v_lshlrev_b32 v5, 7, v5
    v_and_b32 v6, 3, v1
    v_lshlrev_b32 v6, 5, v6
    v_add_u32 v5, v5, v6
    s_lshl_b32 s33, s28, 11
    ''')
    A(f'v_add_u32 v{VS(0)}, s33, v5')
    A(f'v_add_u32 v{VS(1)}, 0x10000, v{VS(0)}')
    A('''
    v_lshrrev_b32 v5, 3, v1
    s_lshl_b32 s33, s24, 7
    s_lshl_b32 s34, s28, 4
    s_add_u32 s33, s33, s34
    v_add_u32 v5, s33, v5
    s_movk_i32 s34, 1280
    v_mul_lo_u32 v5, v5, s34
    v_lshrrev_b32 v6, 4, v1
    v_and_b32 v7, 7, v1
    v_xor_b32 v8, v7, v6
    v_lshlrev_b32 v8, 4, v8
    ''')
    A(f'v_add_u32 v{VOA}, v5, v8')
    A('''
    v_add_u32 v6, 4, v6
    v_xor_b32 v8, v7, v6
    v_lshlrev_b32 v8, 4, v8
    v_add_u32 v8, v5, v8
    ''')
    A(f'v_add_u32 v{VOA+1}, {8*1280-1024}, v8')
    g1_dma_b_setup(A)

def g1_dma_b_setup(A):
    A('''
    v_lshrrev_b32 v6, 4, v1
    s_lshl_b32 s33, s28, 3
    v_add_u32 v5, s33, v6
    v_mul_lo_u32 v5, v5, s26
    v_and_b32 v7, 15, v1
    v_lshrrev_b32 v7, 2, v7
    v_xor_b32 v7, v7, v6
    v_lshlrev_b32 v7, 2, v7
    v_and_b32 v8, 3, v1
    v_add_u32 v7, v7, v8
    v_lshlrev_b32 v7, 4, v7
    v_add_u32 v5, v5, v7
    ''')
    A(f'v_add_u32 v{VOB}, s27, v5')
    A('''
    s_lshl_b32 s33, s26, 2
    s_sub_u32 s33, s33, 1024
    ''')
    A(f'v_add_u32 v{VOB+1}, s33, v{VOB}')

def g1_dma(A, c):
    st = c % 4
    A(f's_add_u32 m0, s35, {st*G1_STAGE}')
    A(f's_movk_i32 s36, {c*128}')
    A.vm(('dma', c), f'buffer_load_dwordx4 v{VOA}, s[12:15], s36 offen lds')
    A.vm(('dma', c), f'buffer_load_dwordx4 v{VOA+1}, s[12:15], s36 offen offset:1024 lds')
    A(f's_add_u32 m0, s35, {st*G1_STAGE+16384}')
    A(f's_mul_i32 s37, s38, {c}')
    A.vm(('dma', c), f'buffer_load_dwordx4 v{VOB}, s[16:19], s37 offen lds')
    A.vm(('dma', c), f'buffer_load_dwordx4 v{VOB+1}, s[16:19], s37 offen offset:1024 lds')

def g1_read_list(c):
    st = c % 4; s = st >> 1; o = (st & 1) * G1_STAGE
    b = c & 1
    L = []
    for ks in range(4):
        L.append(f'ds_read_b128 {vr(FX(b,ks,0))}, v{VA(s,ks)} offset:{o}')
        L.append(f'ds_read_b64_tr_b16 {vr(FW(b,ks),2)}, v{VB(s)} offset:{o + ks*4096}')
        L.append(f'ds_read_b64_tr_b16 {vr(FW(b,ks)+2,2)}, v{VB(s)} offset:{o + ks*4096 + 1024}')
        L.append(f'ds_read_b128 {vr(FX(b,ks,1))}, v{VA(s,ks)} offset:{o + 4096}')
    L.append(f'ds_read_b128 {vr(ST(b))}, v{VS(s)} offset:{o}')
    L.append(f'ds_read_b128 {vr(ST(b)+4)}, v{VS(s)} offset:{o+16}')
    return L

def g1_mainloop(A, swapped):
    NC = 10
    A('s_lshl_b32 s35, s28, 11')
    A('s_lshl_b32 s38, s26, 6')
    for c in range(4):
        g1_dma(A, c)
    for i in range(32):
        A(f'v_mov_b32 v{ACC+i}, 0')
    A(f'v_mov_b32 v{RS}, 0')
    A(f'v_mov_b32 v{RQ}, 0')
    A(f'v_mov_b32 v{CS}, 0')
    A(f'v_mov_b32 v{ONES}, 0x3f803f80')
    A.st()
    A.wait_vm(('dma', 0))
    A('s_barrier')
    A.st()
    for r in g1_read_list(0):
        A.ld('fr', r)
    for c in range(NC):
        b = c & 1
        A.wait_ld_all()
        RL = []
        if c < NC - 1:
            A.wait_vm(('dma', c + 1))
            A('s_barrier')
            if c in (0, 2, 5, 8):
                A.st()
            RL = g1_read_list(c + 1)
            if os.environ.get('NOREAD'):
                RL = []
        for ks in range(4):
            for i in range(2):
                if os.environ.get('NOMFMA'):
                    pass
                elif swapped:
                    A(f'v_mfma_f32_32x32x16_bf16 {vr(ACC+16*i,16)}, {vr(FW(b,ks))}, {vr(FX(b,ks,i))}, {vr(ACC+16*i,16)}')
                else:
                    A(f'v_mfma_f32_32x32x16_bf16 {vr(ACC+16*i,16)}, {vr(FX(b,ks,i))}, {vr(FW(b,ks))}, {vr(ACC+16*i,16)}')
                n = 3 if (2 * ks + i) < 2 else 2
                for r in RL[:n]:
                    A.ld('fr', r)
                RL = RL[n:]
                if ks == 0 and i == 0 and c < NC - 1 and c + 4 < NC and not os.environ.get('NODMA'):
                    g1_dma(A, c + 4)
                if os.environ.get('NODOT'):
                    continue
                for j in range(2):
                    A(f'v_dot2_f32_bf16 v{CS}, v{FW(b,ks)+2*i+j}, v{ONES}, v{CS}')
                j = 2 * ks + i
                A(f'v_dot2_f32_bf16 v{RS}, v{ST(b)+j}, v{ONES}, v{RS}')
                A(f'v_dot2_f32_bf16 v{RQ}, v{ST(b)+j}, v{ST(b)+j}, v{RQ}')
        assert not RL
    A.st()
    for r in (RS, RQ):
        A(f'v_add_f32_dpp v{r}, v{r}, v{r} quad_perm:[1,0,3,2] row_mask:0xf bank_mask:0xf')
        A(f'v_add_f32_dpp v{r}, v{r}, v{r} quad_perm:[2,3,0,1] row_mask:0xf bank_mask:0xf')
    a, b_, p, q = T0, T0 + 1, T0 + 2, T0 + 3
    A(f'v_mul_f32 v{a}, {f32(1/640)}, v{RS}')
    A(f'v_mul_f32 v{b_}, {f32(1/640)}, v{RQ}')
    A(f'v_fma_f32 v{b_}, -v{a}, v{a}, v{b_}')
    A(f'v_max_f32 v{b_}, 0, v{b_}')
    rnd_pair(A, p, a, b_)
    A(f'v_add_f32 v{b_}, {f32(1e-5)}, v{b_}')
    A(f'v_cvt_pk_bf16_f32 v{p}, v{b_}, v{b_}')
    A(f'v_lshlrev_b32 v{b_}, 16, v{p}')
    A(f'v_sqrt_f32 v{b_}, v{b_}')
    A(f'v_cvt_pk_bf16_f32 v{p}, v{b_}, v{b_}')
    A(f'v_lshlrev_b32 v{b_}, 16, v{p}')
    A(f'v_rcp_f32 v{b_}, v{b_}')
    A(f'v_lshrrev_b32 v{q}, 2, v1')
    A(f's_lshl_b32 s33, s28, 4')
    A(f'v_add_u32 v{q}, s33, v{q}')
    A(f'v_lshlrev_b32 v{q}, 2, v{q}')
    A(f'ds_write_b32 v{q}, v{a} offset:{G1_MB & 0xffff}') if G1_MB < 65536 else None
    A(f'v_add_u32 v{q}, {G1_MB}, v{q}')
    A(f'ds_write_b32 v{q}, v{a}')
    A(f'ds_write_b32 v{q}, v{b_} offset:512')
    A(f'v_mov_b32 v{p}, v{CS}')
    A(f'v_permlane32_swap_b32 v{CS}, v{p}')
    A(f'v_add_f32 v{CS}, v{CS}, v{p}')

def act_code(A, kind, regs, tmp):
    P = tmp
    OUT = tmp + 8
    E = tmp + 16
    G = tmp + 32
    if kind == 'plain':
        for k in range(8):
            A(f'v_cvt_pk_bf16_f32 v{OUT+k}, v{regs[2*k]}, v{regs[2*k+1]}')
        return OUT
    for k in range(8):
        A(f'v_cvt_pk_bf16_f32 v{P+k}, v{regs[2*k]}, v{regs[2*k+1]}')
    for k in range(8):
        A(f'v_lshlrev_b32 v{regs[2*k]}, 16, v{P+k}')
        A(f'v_and_b32 v{regs[2*k+1]}, 0xffff0000, v{P+k}')
    if kind == 'phi':
        for k in range(16):
            A(f'v_mul_f32 v{E+k}, {f32(LOG2E)}, v{regs[k]}')
        for k in range(16):
            A(f'v_exp_f32 v{E+k}, v{E+k}')
        for k in range(16):
            A(f'v_add_f32 v{G+k}, 1.0, v{regs[k]}')
        for k in range(8):
            A(f'v_cvt_pk_bf16_f32 v{P+k}, v{E+2*k}, v{E+2*k+1}')
        for k in range(8):
            A(f'v_lshlrev_b32 v{E+2*k}, 16, v{P+k}')
            A(f'v_and_b32 v{E+2*k+1}, 0xffff0000, v{P+k}')
        for k in range(16):
            A(f'v_add_f32 v{E+k}, {f32(1e-6)}, v{E+k}')
        for k0 in range(0, 16, 4):
            for k in range(k0, k0 + 4):
                A(f'v_cmp_lt_f32 s[{40+2*(k-k0)}:{41+2*(k-k0)}], 0, v{regs[k]}')
            for k in range(k0, k0 + 4):
                A(f'v_cndmask_b32 v{E+k}, v{E+k}, v{G+k}, s[{40+2*(k-k0)}:{41+2*(k-k0)}]')
        for k in range(8):
            A(f'v_cvt_pk_bf16_f32 v{OUT+k}, v{E+2*k}, v{E+2*k+1}')
        return OUT
    if kind == 'gelu':
        A(f's_mov_b32 s40, {f32(KKAPPA)}')
        for k in range(16):
            A(f'v_mul_f32 v{E+k}, v{regs[k]}, v{regs[k]}')
        for k in range(16):
            A(f'v_fma_f32 v{E+k}, v{E+k}, s40, 1.0')
        for k in range(16):
            A(f'v_mul_f32 v{G+k}, {f32(-2*KBETA*LOG2E)}, v{regs[k]}')
        for k in range(16):
            A(f'v_mul_f32 v{E+k}, v{E+k}, v{G+k}')
        for k in range(16):
            A(f'v_exp_f32 v{E+k}, v{E+k}')
        for k in range(16):
            A(f'v_add_f32 v{E+k}, 1.0, v{E+k}')
        for k in range(16):
            A(f'v_rcp_f32 v{E+k}, v{E+k}')
        for k in range(16):
            A(f'v_mul_f32 v{E+k}, v{E+k}, v{regs[k]}')
        for k in range(8):
            A(f'v_cvt_pk_bf16_f32 v{OUT+k}, v{E+2*k}, v{E+2*k+1}')
        return OUT
    raise ValueError(kind)

def swap_store(A, OUT, voff, srd_, soff, imm0):
    for gp in range(2):
        b = OUT + 4 * gp
        A(f'v_permlane32_swap_b32 v{b}, v{b+2}')
        A(f'v_permlane32_swap_b32 v{b+1}, v{b+3}')
    for gp in range(2):
        b = OUT + 4 * gp
        A.vm('st', f'buffer_store_dwordx4 {vr(b)}, v{voff}, s[{srd_}:{srd_+3}], s{soff} offen offset:{imm0 + 32*gp}')

def k1_epilogue(A, kind, lbl):
    MB4 = T0 + 8; RI4 = T0 + 24; TMP = T0 + 40
    for i in range(2):
        for g in range(4):
            A.ld('mb', f'ds_read_b128 {vr(MB4+4*g)}, v{T0+4} offset:{(32*i+8*g)*4}')
            A.ld('mb', f'ds_read_b128 {vr(RI4+4*g)}, v{T0+4} offset:{512+(32*i+8*g)*4}')
        A.wait_ld_all()
        regs = [ACC + 16 * i + k for k in range(16)]
        for k in range(16):
            A(f'v_fma_f32 v{regs[k]}, -v{MB4+k}, v{CS}, v{regs[k]}')
        for k in range(16):
            A(f'v_mul_f32 v{regs[k]}, v{regs[k]}, v{RI4+k}')
        OUT = act_code(A, kind, regs, TMP)
        swap_store(A, OUT, T0 + 5, 20, 39, 64 * i)

def gen_k1(A):
    A.label('k1_kernel')
    A('''
    s_cmp_ge_u32 s2, 256
    s_cbranch_scc1 k1_done
    s_load_dwordx4 s[4:7], s[0:1], 0
    s_load_dwordx2 s[8:9], s[0:1], 32
    s_load_dwordx2 s[10:11], s[0:1], 80
    v_lshrrev_b32 v2, 6, v0
    s_and_b32 s33, s2, 7
    s_lshr_b32 s34, s2, 3
    v_readfirstlane_b32 s28, v2
    s_lshr_b32 s24, s33, 1
    s_lshl_b32 s24, s24, 2
    s_lshr_b32 s25, s34, 3
    s_add_u32 s24, s24, s25
    s_and_b32 s25, s33, 1
    s_lshl_b32 s25, s25, 3
    s_and_b32 s34, s34, 7
    s_add_u32 s25, s25, s34
    s_lshr_b32 s29, s28, 2
    s_and_b32 s30, s28, 3
    s_waitcnt lgkmcnt(0)
    ''')
    srd(A, 12, 4, 2048 * 1280)
    srd(A, 20, 10, WS_END)
    A('''
    s_movk_i32 s26, 3840
    s_mov_b32 s18, 2457600
    s_movk_i32 s33, 1280
    s_cmp_lt_u32 s25, 10
    s_cselect_b32 s16, s6, s8
    s_cselect_b32 s17, s7, s9
    s_cselect_b32 s26, s26, 3072
    s_cselect_b32 s18, s18, 1966080
    s_cselect_b32 s33, s33, -1024
    s_lshl_b32 s27, s25, 8
    s_add_i32 s27, s27, s33
    s_and_b32 s17, s17, 0xffff
    s_mov_b32 s19, 0x00020000
    ''')
    g1_lane_setup(A)
    g1_mainloop(A, swapped=False)
    A(f'''
    s_lshl_b32 s33, s29, 6
    v_lshlrev_b32 v{T0+4}, 2, v3
    v_add_u32 v{T0+4}, s33, v{T0+4}
    v_lshlrev_b32 v{T0+4}, 2, v{T0+4}
    v_add_u32 v{T0+4}, {G1_MB}, v{T0+4}
    s_lshl_b32 s34, s30, 5
    v_add_u32 v{T0+5}, s34, v2
    v_lshlrev_b32 v{T0+5}, 12, v{T0+5}
    v_lshlrev_b32 v{T0+6}, 3, v3
    v_add_u32 v{T0+6}, s33, v{T0+6}
    v_lshlrev_b32 v{T0+6}, 1, v{T0+6}
    v_add_u32 v{T0+5}, v{T0+5}, v{T0+6}
    s_lshl_b32 s39, s25, 19
    s_lshl_b32 s33, s24, 8
    s_add_u32 s39, s39, s33
    s_waitcnt lgkmcnt(0)
    s_barrier
    s_cmp_lt_u32 s25, 5
    s_cbranch_scc1 k1_phi
    s_cmp_lt_u32 s25, 10
    s_cbranch_scc1 k1_plain
    ''')
    A.reset_counters()
    A.st()
    k1_epilogue(A, 'gelu', 'g')
    n0 = A.st.n
    A.st.flush(8, 0)
    A.st.n = n0 - 1
    A('s_endpgm')
    A.label('k1_phi')
    A('s_nop 4')
    A.reset_counters()
    A.st()
    k1_epilogue(A, 'phi', 'p')
    A.st.flush(8, 0)
    A.st.n = n0 - 1
    A('s_endpgm')
    A.label('k1_plain')
    A('s_nop 4')
    A.reset_counters()
    A.st()
    k1_epilogue(A, 'plain', 'l')
    A.st.flush(8, 0)
    A.label('k1_done')
    A('s_endpgm')

def k2_epilogue(A, kind):
    CS4 = T0 + 8; MBI = T0 + 24; TMP = T0 + 40
    for g in range(4):
        A.ld('cs', f'ds_read_b128 {vr(CS4+4*g)}, v{T0+4} offset:{32*g}')
    for i in range(2):
        A.ld('cs', f'ds_read_b32 v{MBI+2*i}, v{T0+6} offset:{128*i}')
        A.ld('cs', f'ds_read_b32 v{MBI+2*i+1}, v{T0+6} offset:{512+128*i}')
    A.wait_ld_all()
    for i in range(2):
        regs = [ACC + 16 * i + k for k in range(16)]
        for k in range(16):
            A(f'v_fma_f32 v{regs[k]}, -v{MBI+2*i}, v{CS4+k}, v{regs[k]}')
        for k in range(16):
            A(f'v_mul_f32 v{regs[k]}, v{regs[k]}, v{MBI+2*i+1}')
        OUT = act_code(A, kind, regs, TMP)
        swap_store(A, OUT, T0 + 5 + (2 if i else 0), 20, 39, 0)

def gen_k2(A):
    A.label('k2_kernel')
    A('''
    s_cmp_ge_u32 s2, 256
    s_cbranch_scc1 k2_done
    s_load_dwordx4 s[4:7], s[0:1], 0
    s_load_dwordx2 s[8:9], s[0:1], 32
    s_load_dwordx2 s[10:11], s[0:1], 80
    v_lshrrev_b32 v2, 6, v0
    s_nop 0
    v_readfirstlane_b32 s28, v2
    s_cmp_ge_u32 s2, 240
    s_cbranch_scc1 k2_wt
    s_cmp_ge_u32 s2, 208
    s_cbranch_scc1 k2_kv
    s_cmp_ge_u32 s2, 176
    s_cbranch_scc1 k2_ln
    s_and_b32 s33, s2, 7
    s_lshr_b32 s34, s2, 3
    s_lshl_b32 s24, s33, 1
    s_cmp_ge_u32 s34, 11
    s_cselect_b32 s33, 1, 0
    s_cselect_b32 s25, 11, 0
    s_add_u32 s24, s24, s33
    s_sub_u32 s25, s34, s25
    s_lshr_b32 s29, s28, 2
    s_and_b32 s30, s28, 3
    s_waitcnt lgkmcnt(0)
    ''')
    srd(A, 12, 4, 2048 * 1280)
    srd(A, 20, 10, WS_END)
    A('''
    s_movk_i32 s26, 3840
    s_mov_b32 s18, 2457600
    s_cmp_lt_u32 s25, 5
    s_cselect_b32 s16, s6, s8
    s_cselect_b32 s17, s7, s9
    s_cselect_b32 s26, s26, 3072
    s_cselect_b32 s18, s18, 1966080
    s_cselect_b32 s33, 0, -1280
    s_lshl_b32 s27, s25, 8
    s_add_i32 s27, s27, s33
    s_and_b32 s17, s17, 0xffff
    s_mov_b32 s19, 0x00020000
    ''')
    g1_lane_setup(A)
    g1_mainloop(A, swapped=True)
    A(f'''
    s_lshl_b32 s33, s28, 7
    s_add_u32 s33, s33, {G1_CS}
    v_lshlrev_b32 v{T0+4}, 2, v2
    v_add_u32 v{T0+4}, s33, v{T0+4}
    ds_write_b32 v{T0+4}, v{CS}
    v_lshlrev_b32 v{T0+4}, 4, v3
    v_add_u32 v{T0+4}, s33, v{T0+4}
    s_lshl_b32 s33, s29, 6
    v_add_u32 v{T0+6}, s33, v2
    v_lshlrev_b32 v{T0+6}, 2, v{T0+6}
    v_add_u32 v{T0+6}, {G1_MB}, v{T0+6}
    s_movk_i32 s34, 1280
    s_cmp_lt_u32 s25, 5
    s_cselect_b32 s34, s34, 1536
    v_add_u32 v{T0+5}, s33, v2
    v_mul_lo_u32 v{T0+5}, v{T0+5}, s34
    s_lshl_b32 s33, s30, 6
    v_lshlrev_b32 v{T0+7}, 4, v3
    v_add_u32 v{T0+7}, s33, v{T0+7}
    v_add_u32 v{T0+5}, v{T0+5}, v{T0+7}
    s_lshl_b32 s33, s34, 5
    v_add_u32 v{T0+7}, s33, v{T0+5}
    s_lshl_b32 s33, s34, 7
    s_mul_i32 s39, s33, s24
    s_add_u32 s39, s39, s27
    s_mov_b32 s33, {PQ}
    s_cmp_lt_u32 s25, 5
    s_cselect_b32 s33, s33, {Z1}
    s_add_u32 s39, s39, s33
    s_waitcnt lgkmcnt(0)
    s_barrier
    s_cmp_lt_u32 s25, 5
    s_cbranch_scc1 k2_phi
    ''')
    A.reset_counters()
    k2_epilogue(A, 'gelu')
    A('s_endpgm')
    A.label('k2_phi')
    A('s_nop 4')
    A.reset_counters()
    k2_epilogue(A, 'phi')
    A('s_endpgm')
    gen_k2_ln(A)
    gen_k2_kv(A)
    gen_k2_wt(A)
    A.label('k2_done')
    A('s_endpgm')

def lane_reduce8(A, regs, tmp):
    for r in regs:
        A(f'v_add_f32_dpp v{r}, v{r}, v{r} row_ror:8 row_mask:0xf bank_mask:0xf')
    for r in regs:
        A(f'v_mov_b32 v{tmp}, v{r}')
        A(f'v_permlane16_swap_b32 v{r}, v{tmp}')
        A(f'v_add_f32 v{r}, v{r}, v{tmp}')
    for r in regs:
        A(f'v_mov_b32 v{tmp}, v{r}')
        A(f'v_permlane32_swap_b32 v{r}, v{tmp}')
        A(f'v_add_f32 v{r}, v{r}, v{tmp}')

def gen_k2_ln(A):
    A.label('k2_ln')
    A.reset_counters()
    X = 16; U = 64; S = 160; M = 168; R = 176; TM = 184; RD = 192
    A('''
    s_waitcnt lgkmcnt(0)
    s_sub_u32 s24, s2, 176
    ''')
    srd(A, 20, 10, WS_END)
    A(f'''
    v_and_b32 v1, 63, v0
    v_lshrrev_b32 v2, 3, v1
    v_and_b32 v3, 7, v1
    s_mul_i32 s33, s28, 96
    v_add_u32 v2, s33, v2
    v_lshlrev_b32 v2, 12, v2
    v_lshlrev_b32 v4, 4, v3
    v_add_u32 v2, v2, v4
    s_lshl_b32 s33, s24, 7
    v_add_u32 v2, s33, v2
    ''')
    for it in range(12):
        A(f's_mov_b32 s34, {1280*4096 + 32768*it}')
        A.vm(('x', it), f'buffer_load_dwordx4 {vr(X+4*it)}, v2, s[20:23], s34 offen')
    for e in range(8):
        A(f'v_mov_b32 v{S+e}, 0')
    A(f'''
    v_lshlrev_b32 v5, 5, v3
    s_lshl_b32 s33, s28, 8
    v_add_u32 v6, s33, v5
    ''')
    for it in range(12):
        A.wait_vm(('x', it))
        for d in range(4):
            A(f'v_lshlrev_b32 v{U+8*it+2*d}, 16, v{X+4*it+d}')
            A(f'v_and_b32 v{U+8*it+2*d+1}, 0xffff0000, v{X+4*it+d}')
        for e in range(8):
            A(f'v_add_f32 v{S+e}, v{S+e}, v{U+8*it+e}')
    def xwave(base_off, dst):
        lane_reduce8(A, [S + e for e in range(8)], TM)
        A(f'ds_write_b128 v6, {vr(S)} offset:{base_off}')
        A(f'ds_write_b128 v6, {vr(S+4)} offset:{base_off+16}')
        A('s_waitcnt lgkmcnt(0)')
        A('s_barrier')
        for w in range(8):
            A(f'ds_read_b128 {vr(RD+8*w)}, v5 offset:{base_off+256*w}')
            A(f'ds_read_b128 {vr(RD+8*w+4)}, v5 offset:{base_off+256*w+16}')
        A('s_waitcnt lgkmcnt(0)')
        for e in range(8):
            A(f'v_add_f32 v{dst+e}, v{RD+e}, v{RD+8+e}')
        for w in range(2, 8):
            for e in range(8):
                A(f'v_add_f32 v{dst+e}, v{dst+e}, v{RD+8*w+e}')
        for e in range(8):
            A(f'v_mul_f32 v{dst+e}, {f32(1/768)}, v{dst+e}')
    xwave(0, M)
    for e in range(8):
        A(f'v_mov_b32 v{S+e}, 0')
    for it in range(12):
        for e in range(8):
            A(f'v_sub_f32 v{TM+e}, v{U+8*it+e}, v{M+e}')
        for e in range(8):
            A(f'v_fmac_f32 v{S+e}, v{TM+e}, v{TM+e}')
    xwave(4096, R)
    for e in range(8):
        rnd_pair(A, TM, M + e, R + e)
    for e in range(8):
        A(f'v_add_f32 v{R+e}, {f32(1e-5)}, v{R+e}')
    for e in range(0, 8, 2):
        rnd_pair(A, TM, R + e, R + e + 1)
    for e in range(8):
        A(f'v_sqrt_f32 v{R+e}, v{R+e}')
    for e in range(0, 8, 2):
        rnd_pair(A, TM, R + e, R + e + 1)
    for e in range(8):
        A(f'v_rcp_f32 v{R+e}, v{R+e}')
    for it in range(12):
        for e in range(8):
            A(f'v_sub_f32 v{U+8*it+e}, v{U+8*it+e}, v{M+e}')
        for e in range(0, 8, 2):
            rnd_pair(A, TM + e // 2, U + 8 * it + e, U + 8 * it + e + 1)
        for e in range(8):
            A(f'v_mul_f32 v{U+8*it+e}, v{U+8*it+e}, v{R+e}')
        for d in range(4):
            A(f'v_cvt_pk_bf16_f32 v{X+4*it+d}, v{U+8*it+2*d}, v{U+8*it+2*d+1}')
        A(f's_mov_b32 s34, {Z2NT + 32768*it}')
        A(f'buffer_store_dwordx4 {vr(X+4*it)}, v2, s[20:23], s34 offen')
    A('s_endpgm')

def gen_k2_kv(A):
    A.label('k2_kv')
    A.reset_counters()
    AF = 16; BF = 80; KVA = 144; ZA = 160; ON = 176; TM = 180
    A('''
    s_waitcnt lgkmcnt(0)
    s_sub_u32 s24, s2, 208
    ''')
    srd(A, 20, 10, WS_END)
    A(f'''
    v_and_b32 v1, 63, v0
    v_and_b32 v2, 31, v1
    v_lshrrev_b32 v3, 5, v1
    s_mul_i32 s33, s24, 20
    v_add_u32 v4, s33, v2
    v_lshlrev_b32 v4, 12, v4
    v_lshlrev_b32 v5, 4, v3
    v_add_u32 v4, v4, v5
    s_lshl_b32 s33, s28, 9
    v_add_u32 v4, s33, v4
    s_mov_b32 s34, {640*4096}
    ''')
    for q in range(16):
        A.vm(('f', q), f'buffer_load_dwordx4 {vr(AF+4*q)}, v4, s[20:23], 0 offen offset:{32*q}')
        A.vm(('f', q), f'buffer_load_dwordx4 {vr(BF+4*q)}, v4, s[20:23], s34 offen offset:{32*q}')
    for i in range(32):
        A(f'v_mov_b32 v{KVA+i}, 0')
    for i in range(4):
        A(f'v_mov_b32 v{ON+i}, 0x3f803f80')
    for q in range(16):
        A.wait_vm(('f', q))
        A(f'v_mfma_f32_32x32x16_bf16 {vr(KVA,16)}, {vr(AF+4*q)}, {vr(BF+4*q)}, {vr(KVA,16)}')
        A(f'v_mfma_f32_32x32x16_bf16 {vr(ZA,16)}, {vr(AF+4*q)}, {vr(ON)}, {vr(ZA,16)}')
    A(f'''
    s_lshl_b32 s33, s28, 12
    v_lshlrev_b32 v6, 7, v2
    v_add_u32 v6, v6, v5
    v_add_u32 v6, s33, v6
    s_lshl_b32 s33, s28, 7
    v_add_u32 v7, s33, v5
    ''')
    for g in range(4):
        A(f'ds_write_b128 v6, {vr(KVA+4*g)} offset:{32*g}')
        A(f'ds_write_b128 v7, {vr(ZA+4*g)} offset:{32768+32*g}')
    A('''
    s_waitcnt lgkmcnt(0)
    s_barrier
    v_lshlrev_b32 v8, 3, v0
    v_and_b32 v9, 15, v0
    v_lshlrev_b32 v10, 3, v9
    ''')
    for w in range(8):
        A(f'ds_read_b64 {vr(AF+2*w,2)}, v8 offset:{4096*w}')
        A(f'ds_read_b64 {vr(BF+2*w,2)}, v10 offset:{32768+128*w}')
    A('s_waitcnt lgkmcnt(0)')
    for base in (AF, BF):
        for w in range(1, 8):
            A(f'v_add_f32 v{base}, v{base}, v{base+2*w}')
            A(f'v_add_f32 v{base+1}, v{base+1}, v{base+2*w+1}')
    A(f'''
    v_cvt_pk_bf16_f32 v{TM}, v{AF}, v{AF+1}
    v_cvt_pk_bf16_f32 v{TM+1}, v{BF}, v{BF+1}
    v_cmp_gt_u32 vcc, 10, v9
    s_nop 1
    v_cndmask_b32 v{TM}, 0, v{TM}, vcc
    v_cndmask_b32 v{TM+1}, 0, v{TM+1}, vcc
    v_lshlrev_b32 v11, 2, v0
    s_lshl_b32 s33, s24, 11
    s_add_u32 s33, s33, {KVT}
    buffer_store_dword v{TM}, v11, s[20:23], s33 offen
    v_cmp_gt_u32 vcc, 16, v0
    v_mov_b32 v12, 0x7ffffff0
    s_nop 0
    v_cndmask_b32 v11, v12, v11, vcc
    s_lshl_b32 s33, s24, 6
    s_add_u32 s33, s33, {ZP}
    buffer_store_dword v{TM+1}, v11, s[20:23], s33 offen
    s_endpgm
    ''')

def gen_k2_wt(A):
    A.label('k2_wt')
    A.reset_counters()
    A('''
    s_waitcnt lgkmcnt(0)
    s_load_dwordx2 s[4:5], s[0:1], 16
    s_load_dwordx2 s[6:7], s[0:1], 56
    s_sub_u32 s24, s2, 240
    s_movk_i32 s26, 1280
    s_mov_b32 s27, 0
    v_and_b32 v1, 63, v0
    v_and_b32 v2, 31, v1
    v_lshrrev_b32 v3, 5, v1
    s_and_b32 s30, s28, 3
    s_lshr_b32 s29, s28, 2
    s_waitcnt lgkmcnt(0)
    ''')
    srd(A, 20, 10, WS_END)
    g1_dma_b_setup(A)
    A('''
    v_and_b32 v5, 15, v1
    v_lshrrev_b32 v5, 2, v5
    v_and_b32 v6, 3, v1
    v_lshlrev_b32 v7, 3, v3
    v_add_u32 v7, v7, v5
    v_lshlrev_b32 v7, 8, v7
    v_xor_b32 v8, s30, v5
    v_lshlrev_b32 v8, 6, v8
    v_add_u32 v7, v7, v8
    v_lshrrev_b32 v8, 4, v1
    v_and_b32 v8, 1, v8
    v_lshlrev_b32 v8, 5, v8
    v_add_u32 v7, v7, v8
    v_lshlrev_b32 v6, 3, v6
    v_add_u32 v7, v7, v6
    s_lshl_b32 s33, s29, 13
    v_add_u32 v7, s33, v7
    s_lshl_b32 s35, s28, 11
    s_lshl_b32 s33, s30, 5
    v_add_u32 v9, s33, v2
    s_movk_i32 s33, 2816
    v_mul_lo_u32 v9, v9, s33
    v_lshlrev_b32 v10, 4, v3
    v_add_u32 v9, v9, v10
    s_lshl_b32 s33, s29, 6
    v_add_u32 v9, s33, v9
    s_mov_b32 s18, 983040
    s_mov_b32 s19, 0x00020000
    ''')
    def tile_scalars(q):
        A(f'''
        s_add_u32 s40, s24, {16*q}
        s_mul_i32 s41, s40, 52429
        s_lshr_b32 s41, s41, 18
        s_mul_i32 s42, s41, 5
        s_sub_u32 s42, s40, s42
        ''')
    for q in range(7):
        if q == 6:
            A('s_cmp_ge_u32 s24, 14')
            A('s_cbranch_scc1 k2_wt_issued')
        tile_scalars(q)
        A(f'''
        s_cmp_lt_u32 s41, 10
        s_cselect_b32 s16, s4, s6
        s_cselect_b32 s17, s5, s7
        s_cselect_b32 s43, 0, 10
        s_and_b32 s17, s17, 0xffff
        s_sub_u32 s43, s41, s43
        s_mul_i32 s43, s43, {64*1280}
        s_lshl_b32 s44, s42, 8
        s_add_u32 s43, s43, s44
        s_add_u32 m0, s35, {16384*q}
        s_nop 0
        buffer_load_dwordx4 v{VOB}, s[16:19], s43 offen lds
        buffer_load_dwordx4 v{VOB+1}, s[16:19], s43 offen offset:1024 lds
        ''')
    A.label('k2_wt_issued')
    A('''
    s_waitcnt vmcnt(0)
    s_barrier
    ''')
    for q in range(7):
        if q == 6:
            A('s_cmp_ge_u32 s24, 14')
            A('s_cbranch_scc1 k2_wt_done')
        tile_scalars(q)
        base = 16 + 8 * q
        A(f'v_add_u32 v11, {16384*q}, v7')
        for kk in range(2):
            A(f'ds_read_b64_tr_b16 {vr(base+4*kk,2)}, v11 offset:{kk*4096}')
            A(f'ds_read_b64_tr_b16 {vr(base+4*kk+2,2)}, v11 offset:{kk*4096+1024}')
        A(f'''
        s_mul_i32 s43, s42, {128*2816}
        s_lshl_b32 s44, s41, 7
        s_add_u32 s43, s43, s44
        s_add_u32 s43, s43, {WT}
        s_waitcnt lgkmcnt(0)
        buffer_store_dwordx4 {vr(base)}, v9, s[20:23], s43 offen
        buffer_store_dwordx4 {vr(base+4)}, v9, s[20:23], s43 offen offset:32
        ''')
    A.label('k2_wt_done')
    A('s_endpgm')

K3_STAGE = 40960
K3_LDS = 4 * K3_STAGE

def xcd_decode_8x4(A):
    A("""
    s_and_b32 s33, s2, 7
    s_lshr_b32 s26, s2, 3
    s_lshr_b32 s24, s33, 1
    s_lshl_b32 s24, s24, 3
    s_lshr_b32 s25, s26, 2
    s_add_u32 s24, s24, s25
    s_and_b32 s25, s33, 1
    s_lshl_b32 s25, s25, 2
    s_and_b32 s34, s26, 3
    s_add_u32 s25, s25, s34
    """)

def dma_voffs(A, dst, n, rows_per_wave, stride, base_row_sreg, extra):
    for i in range(n):
        A(f"""
        s_mul_i32 s33, s28, {rows_per_wave}
        s_add_u32 s33, s33, {4*i}
        v_add_u32 v4, s33, v3
        v_and_b32 v5, 15, v4
        v_xor_b32 v5, v5, v2
        v_lshlrev_b32 v5, 4, v5
        v_add_u32 v4, s{base_row_sreg}, v4
        s_movk_i32 s34, {stride}
        v_mul_lo_u32 v4, v4, s34
        v_add_u32 v4, v4, v5
        v_add_u32 v{dst+i}, {extra - 1024*(i & 3)}, v4
        """)

def gen_k3(A):
    A.label('k3_kernel')
    A.reset_counters()
    A("""
    s_cmp_ge_u32 s2, 256
    s_cbranch_scc1 k3_done
    s_load_dwordx4 s[4:7], s[0:1], 40
    s_load_dwordx2 s[10:11], s[0:1], 80
    v_lshrrev_b32 v2, 6, v0
    v_and_b32 v1, 63, v0
    v_readfirstlane_b32 s28, v2
    v_and_b32 v2, 15, v1
    v_lshrrev_b32 v3, 4, v1
    """)
    xcd_decode_8x4(A)
    A('s_waitcnt lgkmcnt(0)')
    srd(A, 12, 4, 2048 * 4096)
    srd(A, 16, 6, 4096)
    srd(A, 20, 10, WS_END)
    VDA, VDB, VRD = 208, 212, 218
    FR = lambda b: 128 + 40 * b
    A('s_lshl_b32 s40, s24, 6')
    A('s_mul_i32 s41, s25, 96')
    dma_voffs(A, VDA, 4, 16, 4096, 40, 0)
    dma_voffs(A, VDB, 6, 24, 4096, 41, Z2NT)
    A(f"""
    s_lshl_b32 s33, s28, 2
    v_add_u32 v4, s33, v3
    v_xor_b32 v4, v4, v2
    v_lshlrev_b32 v4, 4, v4
    v_lshlrev_b32 v5, 8, v2
    v_add_u32 v{VRD}, v4, v5
    s_lshl_b32 s42, s28, 12
    s_mul_i32 s43, s28, 6144
    s_add_u32 s43, s43, 16384
    """)
    for st in range(1, 4):
        A(f'v_add_u32 v{VRD+st}, {K3_STAGE*st}, v{VRD}')
    A(f"""
    s_and_b32 s33, s2, 7
    s_lshl_b32 s33, s33, 1
    s_add_u32 s49, s33, s26
    """)
    def dma(c):
        st = c % 4
        A(f's_add_u32 s44, s49, {c}')
        A(f's_and_b32 s44, s44, 15')
        A(f's_lshl_b32 s44, s44, 8')
        A(f's_add_u32 m0, s42, {st*K3_STAGE}')
        for i in range(4):
            A.vm(('d', c), f'buffer_load_dwordx4 v{VDA+i}, s[12:15], s44 offen offset:{1024*i} lds')
        A(f's_add_u32 m0, s43, {st*K3_STAGE}')
        for i in range(4):
            A.vm(('d', c), f'buffer_load_dwordx4 v{VDB+i}, s[20:23], s44 offen offset:{1024*i} lds')
        A(f's_add_u32 m0, s43, {st*K3_STAGE+4096}')
        for i in range(4, 6):
            A.vm(('d', c), f'buffer_load_dwordx4 v{VDB+i}, s[20:23], s44 offen offset:{1024*(i-4)} lds')
    def read_list(c):
        st = c % 4; fb = FR(c & 1)
        L = []
        for j in range(6):
            L.append(f'ds_read_b128 {vr(fb+4*j)}, v{VRD+st} offset:{16384+4096*j}')
        for i in range(4):
            L.append(f'ds_read_b128 {vr(fb+24+4*i)}, v{VRD+st} offset:{4096*i}')
        return L
    A(f"""
    s_lshr_b32 s33, s2, 1
    s_lshl_b32 s33, s33, 4
    v_add_u32 v4, s33, v2
    s_movk_i32 s34, 1280
    v_mul_lo_u32 v5, v4, s34
    v_lshlrev_b32 v6, 4, v3
    v_add_u32 v5, v5, v6
    s_and_b32 s35, s2, 1
    s_lshl_b32 s35, s35, 4
    s_lshl_b32 s34, s28, 2
    s_add_u32 s35, s35, s34
    s_mul_i32 s36, s35, 40
    s_add_u32 s37, s36, {PQ}
    v_lshlrev_b32 v7, 6, v2
    v_add_u32 v7, v7, v6
    s_lshl_b32 s38, s35, 11
    s_add_u32 s38, s38, {KVT}
    s_add_u32 s45, s38, 4096
    s_lshl_b32 s39, s35, 6
    s_add_u32 s39, s39, {ZP}
    """)
    OF = 16
    for q in range(4):
        b = OF + 16 * q
        sk = 38 if q < 2 else 45
        A.vm('o', f'buffer_load_dwordx4 {vr(b)}, v5, s[20:23], s37 offen offset:{40*q}')
        A.vm('o', f'buffer_load_dwordx4 {vr(b+4)}, v7, s[20:23], s{sk} offen offset:{2048*(q&1)}')
        A.vm('o', f'buffer_load_dwordx4 {vr(b+8)}, v7, s[20:23], s{sk} offen offset:{2048*(q&1)+1024}')
        A.vm('o', f'buffer_load_dwordx4 {vr(b+12)}, v6, s[20:23], s39 offen offset:{64*q}')
    for c in range(4):
        dma(c)
    if not os.environ.get('K3TOUCH'):
        A('s_branch k3_touch_skip')
    A(f"""
    s_cmp_lt_u32 s28, 2
    s_cbranch_scc0 k3_touch_b
    s_and_b32 s33, s26, 3
    s_lshl_b32 s33, s33, 4
    s_add_u32 s33, s33, s40
    v_add_u32 v8, s33, v2
    v_lshlrev_b32 v8, 12, v8
    v_lshlrev_b32 v9, 7, v3
    v_add_u32 v8, v8, v9
    s_mul_i32 s33, s28, 1536
    s_add_u32 s33, s33, 1024
    buffer_load_dword v10, v8, s[12:15], s33 offen
    buffer_load_dword v11, v8, s[12:15], s33 offen offset:512
    buffer_load_dword v12, v8, s[12:15], s33 offen offset:1024
    s_branch k3_touch_done
    """)
    A.label('k3_touch_b')
    A(f"""
    s_lshr_b32 s33, s26, 2
    s_mul_i32 s33, s33, 12
    s_add_u32 s33, s33, s41
    v_min_u32 v8, 11, v2
    v_add_u32 v8, s33, v8
    v_lshlrev_b32 v8, 12, v8
    v_lshlrev_b32 v9, 7, v3
    v_add_u32 v8, v8, v9
    s_mul_i32 s33, s28, 1536
    s_add_u32 s33, s33, {Z2NT + 1024 - 3072}
    buffer_load_dword v10, v8, s[20:23], s33 offen
    buffer_load_dword v11, v8, s[20:23], s33 offen offset:512
    buffer_load_dword v12, v8, s[20:23], s33 offen offset:1024
    """)
    A.label('k3_touch_done')
    if os.environ.get('K3TOUCH'):
        A.vmq += ['t', 't', 't']
    A.label('k3_touch_skip')
    for i in range(96):
        A(f'v_accvgpr_write_b32 a{i}, 0')
    A.st()
    A.wait_vm('o')
    A.st()
    OD = 80
    for q in range(4):
        b = OF + 16 * q; d = OD + 12 * q
        A(f'v_mfma_f32_16x16x32_bf16 {vr(d)}, {vr(b+4)}, {vr(b)}, 0')
        A(f'v_mfma_f32_16x16x32_bf16 {vr(d+4)}, {vr(b+8)}, {vr(b)}, 0')
        A(f'v_mfma_f32_16x16x32_bf16 {vr(d+8)}, {vr(b+12)}, {vr(b)}, 0')
    A(f"""
    s_movk_i32 s34, 2816
    v_mul_lo_u32 v13, v4, s34
    v_lshlrev_b32 v14, 3, v3
    v_add_u32 v13, v13, v14
    v_cmp_eq_u32 vcc, 0, v3
    v_mov_b32 v15, 0x7ffffff0
    s_add_u32 s36, s36, {OH}
    v_cndmask_b32 v14, v15, v13, vcc
    """)
    for q in range(4):
        d = OD + 12 * q; t = OF + 4 * q
        A(f'v_cvt_pk_bf16_f32 v{t}, v{d+8}, v{d+8}')
        A(f'v_lshlrev_b32 v{d+8}, 16, v{t}')
        A(f'v_add_f32 v{d+8}, {f32(1e-6)}, v{d+8}')
        A(f'v_cvt_pk_bf16_f32 v{t}, v{d+8}, v{d+8}')
        A(f'v_lshlrev_b32 v{d+8}, 16, v{t}')
        A(f'v_rcp_f32 v{d+8}, v{d+8}')
        for k in range(0, 8, 2):
            rnd_pair(A, t, d + k, d + k + 1)
        for k in range(8):
            A(f'v_mul_f32 v{d+k}, v{d+k}, v{d+8}')
        for k in range(4):
            A(f'v_cvt_pk_bf16_f32 v{t+k}, v{d+2*k}, v{d+2*k+1}')
        A.vm('os', f'buffer_store_dwordx2 {vr(t,2)}, v13, s[20:23], s36 offen offset:{40*q}')
        A.vm('os', f'buffer_store_dwordx2 {vr(t+2,2)}, v14, s[20:23], s36 offen offset:{40*q+32}')
    Z1R = 96; BS = 108
    A(f"""
    s_lshl_b32 s34, s28, 4
    s_add_u32 s33, s40, s34
    v_add_u32 v13, s33, v2
    s_movk_i32 s34, 1536
    v_mul_lo_u32 v14, v13, s34
    v_lshlrev_b32 v11, 3, v3
    v_add_u32 v14, v14, v11
    s_mul_i32 s46, s25, 192
    s_add_u32 s47, s46, {Z1}
    s_movk_i32 s34, 2816
    v_mul_lo_u32 v15, v13, s34
    v_add_u32 v15, v15, v11
    s_add_u32 s48, s46, {OH + 1280}
    v_lshlrev_b32 v13, 1, v13
    """)
    NC = 16
    A.wait_vm(('d', 0))
    A('s_barrier')
    A.st()
    for r in read_list(0):
        A.ld('fr', r)
    for c in range(NC):
        fb = FR(c & 1)
        A.wait_ld_all()
        RL = []
        if c < NC - 1:
            A.wait_vm(('d', c + 1))
            A('s_barrier')
            RL = read_list(c + 1)
        if c in (3, 7, 11):
            A.st()
        n = 0
        for i in range(4):
            for j in range(6):
                acc = (j * 4 + i) * 4
                A(f'v_mfma_f32_16x16x32_bf16 a[{acc}:{acc+3}], {vr(fb+4*j)}, {vr(fb+24+4*i)}, a[{acc}:{acc+3}]')
                n += 1
                if n % 2 == 0 and RL:
                    A.ld('fr', RL.pop(0))
                if n == 1 and c + 4 < NC:
                    dma(c + 4)
        assert not RL
        if c == 9:
            for j in range(6):
                A.vm('z1', f'buffer_load_dwordx2 {vr(Z1R+2*j,2)}, v14, s[20:23], s47 offen offset:{32*j}')
            A.vm('z1', f'buffer_load_ushort v{BS}, v13, s[16:19], 0 offen')
    A.st()
    A(f"""
    v_lshlrev_b32 v4, 4, v1
    s_mul_i32 s33, s28, 24576
    v_add_u32 v5, s33, v4
    s_lshl_b32 s33, s28, 10
    v_add_u32 v6, s33, v4
    v_add_u32 v7, 49152, v6
    s_barrier
    """)
    for tl in range(24):
        A(f'ds_write_b128 v5, a[{4*tl}:{4*tl+3}] offset:{1024*tl}')
    A('s_waitcnt lgkmcnt(0)')
    A('s_barrier')
    RB = 128
    for src in range(4):
        for j in range(6):
            A(f'ds_read_b128 {vr(RB+24*src+4*j)}, v{6 if src < 2 else 7} offset:{(src&1)*24576 + 4096*j}')
    A('s_waitcnt lgkmcnt(0)')
    for src in range(1, 4):
        for k in range(24):
            A(f'v_add_f32 v{RB+k}, v{RB+k}, v{RB+24*src+k}')
    A.wait_vm('z1')
    A(f'v_lshlrev_b32 v{BS}, 16, v{BS}')
    TP = 16
    for k in range(0, 24, 2):
        rnd_pair(A, TP + k // 2, RB + k, RB + k + 1)
    for k in range(24):
        A(f'v_add_f32 v{RB+k}, v{RB+k}, v{BS}')
    for k in range(0, 24, 2):
        rnd_pair(A, TP + k // 2, RB + k, RB + k + 1)
    for k in range(12):
        A(f'v_lshlrev_b32 v{TP+2*k}, 16, v{Z1R+k}')
        A(f'v_and_b32 v{TP+2*k+1}, 0xffff0000, v{Z1R+k}')
    for k in range(24):
        A(f'v_mul_f32 v{RB+k}, v{RB+k}, v{TP+k}')
    for k in range(12):
        A(f'v_cvt_pk_bf16_f32 v{Z1R+k}, v{RB+2*k}, v{RB+2*k+1}')
    for j in range(6):
        A(f'buffer_store_dwordx2 {vr(Z1R+2*j,2)}, v15, s[20:23], s48 offen offset:{32*j}')
    A.st.flush(4, 2)
    A.label('k3_done')
    A('s_endpgm')

K4_STAGE = 36864
K4_LDS = 163840

def gen_k4(A):
    A.label('k4_kernel')
    A.reset_counters()
    A("""
    s_cmp_ge_u32 s2, 256
    s_cbranch_scc1 k4_done
    s_load_dwordx2 s[4:5], s[0:1], 0
    s_load_dwordx2 s[6:7], s[0:1], 64
    s_load_dwordx2 s[10:11], s[0:1], 80
    v_lshrrev_b32 v2, 6, v0
    v_and_b32 v1, 63, v0
    v_readfirstlane_b32 s28, v2
    v_and_b32 v2, 15, v1
    v_lshrrev_b32 v3, 4, v1
    """)
    xcd_decode_8x4(A)
    A('s_waitcnt lgkmcnt(0)')
    srd(A, 12, 4, 2048 * 1280)
    srd(A, 16, 6, 2048 * 1280)
    srd(A, 20, 10, WS_END)
    VDA, VDB, VRD = 208, 213, 218
    FR = lambda b: 128 + 36 * b
    A('s_mul_i32 s40, s25, 80')
    A('s_lshl_b32 s41, s24, 6')
    dma_voffs(A, VDA, 5, 20, 2816, 40, WT)
    dma_voffs(A, VDB, 4, 16, 2816, 41, OH)
    A(f"""
    s_lshl_b32 s33, s28, 2
    v_add_u32 v4, s33, v3
    v_xor_b32 v4, v4, v2
    v_lshlrev_b32 v4, 4, v4
    v_lshlrev_b32 v5, 8, v2
    v_add_u32 v{VRD}, v4, v5
    s_mul_i32 s42, s28, 5120
    s_lshl_b32 s43, s28, 12
    s_add_u32 s43, s43, 20480
    """)
    for st in range(1, 4):
        A(f'v_add_u32 v{VRD+st}, {K4_STAGE*st}, v{VRD}')
    def dma(c):
        st = c % 4
        A(f's_movk_i32 s44, {256*c}')
        A(f's_add_u32 m0, s42, {st*K4_STAGE}')
        for i in range(4):
            A.vm(('d', c), f'buffer_load_dwordx4 v{VDA+i}, s[20:23], s44 offen offset:{1024*i} lds')
        A(f's_add_u32 m0, s42, {st*K4_STAGE+4096}')
        A.vm(('d', c), f'buffer_load_dwordx4 v{VDA+4}, s[20:23], s44 offen lds')
        A(f's_add_u32 m0, s43, {st*K4_STAGE}')
        for i in range(4):
            A.vm(('d', c), f'buffer_load_dwordx4 v{VDB+i}, s[20:23], s44 offen offset:{1024*i} lds')
    def read_list(c):
        st = c % 4; fb = FR(c & 1)
        L = []
        for j in range(5):
            L.append(f'ds_read_b128 {vr(fb+4*j)}, v{VRD+st} offset:{4096*j}')
        for i in range(4):
            L.append(f'ds_read_b128 {vr(fb+20+4*i)}, v{VRD+st} offset:{20480+4096*i}')
        return L
    A.st()
    for c in range(4):
        dma(c)
    A(f"""
    s_movk_i32 s34, 2816
    v_lshlrev_b32 v9, 7, v3
    s_cmp_lt_u32 s28, 2
    s_cbranch_scc0 k4_touch_b
    s_and_b32 s33, s26, 3
    s_lshl_b32 s33, s33, 4
    s_add_u32 s33, s33, s41
    v_add_u32 v8, s33, v2
    v_mul_lo_u32 v8, v8, s34
    v_add_u32 v8, v8, v9
    s_lshl_b32 s33, s28, 10
    s_add_u32 s33, s33, {OH + 1024}
    s_branch k4_touch_go
    """)
    A.label('k4_touch_b')
    A(f"""
    s_lshr_b32 s33, s26, 2
    s_mul_i32 s33, s33, 10
    s_add_u32 s33, s33, s40
    v_min_u32 v8, 9, v2
    v_add_u32 v8, s33, v8
    v_mul_lo_u32 v8, v8, s34
    v_add_u32 v8, v8, v9
    s_lshl_b32 s33, s28, 10
    s_add_u32 s33, s33, {WT + 1024 - 2048}
    """)
    A.label('k4_touch_go')
    A('s_nop 0')
    A.vm('t', 'buffer_load_dword v10, v8, s[20:23], s33 offen')
    A.vm('t', 'buffer_load_dword v11, v8, s[20:23], s33 offen offset:512')
    for i in range(160):
        A(f'v_accvgpr_write_b32 a{i}, 0')
    XR = 16
    A(f"""
    s_lshl_b32 s34, s28, 4
    s_add_u32 s33, s41, s34
    v_add_u32 v13, s33, v2
    s_movk_i32 s34, 1280
    v_mul_lo_u32 v14, v13, s34
    v_lshlrev_b32 v12, 3, v3
    v_add_u32 v14, v14, v12
    s_mul_i32 s46, s25, 160
    """)
    NC = 11
    A.wait_vm(('d', 0))
    A('s_barrier')
    A.st()
    for r in read_list(0):
        A.ld('fr', r)
    for c in range(NC):
        fb = FR(c & 1)
        ph = 0 if c < 5 else 1
        A.wait_ld_all()
        RL = []
        if c < NC - 1:
            A.wait_vm(('d', c + 1))
            A('s_barrier')
            RL = read_list(c + 1)
        if c in (3, 6, 9):
            A.st()
        n = 0
        for i in range(4):
            for j in range(5):
                acc = ph * 80 + (j * 4 + i) * 4
                A(f'v_mfma_f32_16x16x32_bf16 a[{acc}:{acc+3}], {vr(fb+4*j)}, {vr(fb+20+4*i)}, a[{acc}:{acc+3}]')
                n += 1
                if n % 2 == 0 and RL:
                    A.ld('fr', RL.pop(0))
                if n == 1 and c + 4 < NC:
                    dma(c + 4)
        assert not RL
        if c == 4:
            for j in range(5):
                A.vm('x', f'buffer_load_dwordx2 {vr(XR+2*j,2)}, v14, s[12:15], s46 offen offset:{32*j}')
    A.st()
    A(f"""
    v_lshlrev_b32 v4, 4, v1
    s_mul_i32 s33, s28, 20480
    v_add_u32 v5, s33, v4
    v_add_u32 v6, 81920, v5
    s_lshl_b32 s33, s28, 10
    v_add_u32 v7, s33, v4
    s_barrier
    """)
    for ph in range(2):
        for tl in range(20):
            A(f'ds_write_b128 v{5+ph}, a[{ph*80+4*tl}:{ph*80+4*tl+3}] offset:{1024*tl}')
    A('s_waitcnt lgkmcnt(0)')
    A('s_barrier')
    RB = 64
    for ph in range(2):
        for src in range(4):
            off = ph * 81920 + src * 20480
            A(f'v_add_u32 v{8+src}, {off}, v7')
        for src in range(4):
            for j in range(5):
                A(f'ds_read_b128 {vr(RB+80*ph+20*src+4*j)}, v{8+src} offset:{4096*j}')
        A('s_waitcnt lgkmcnt(0)')
        for src in range(1, 4):
            for k in range(20):
                A(f'v_add_f32 v{RB+80*ph+k}, v{RB+80*ph+k}, v{RB+80*ph+20*src+k}')
    A.st()
    A.wait_vm('x')
    TP = 32
    RA = RB; RBB = RB + 80
    for k in range(0, 20, 2):
        rnd_pair(A, TP + k // 2, RA + k, RA + k + 1)
    for k in range(0, 20, 2):
        rnd_pair(A, TP + k // 2, RBB + k, RBB + k + 1)
    for k in range(10):
        A(f'v_lshlrev_b32 v{TP+2*k}, 16, v{XR+k}')
        A(f'v_and_b32 v{TP+2*k+1}, 0xffff0000, v{XR+k}')
    for k in range(20):
        A(f'v_add_f32 v{RA+k}, v{TP+k}, v{RA+k}')
    for k in range(0, 20, 2):
        rnd_pair(A, TP + k // 2, RA + k, RA + k + 1)
    for k in range(20):
        A(f'v_add_f32 v{RA+k}, v{RA+k}, v{RBB+k}')
    for k in range(10):
        A(f'v_cvt_pk_bf16_f32 v{XR+k}, v{RA+2*k}, v{RA+2*k+1}')
    for j in range(5):
        A(f'buffer_store_dwordx2 {vr(XR+2*j,2)}, v14, s[16:19], s46 offen offset:{32*j}')
    A.st.flush(4, 3)
    A.label('k4_done')
    A('s_endpgm')

def kd(name, vgpr, accum, sgpr=100):
    return f'''
.amdhsa_kernel {name}
  .amdhsa_next_free_vgpr {vgpr}
  .amdhsa_next_free_sgpr {sgpr}
  .amdhsa_accum_offset {accum}
  .amdhsa_group_segment_fixed_size 0
  .amdhsa_kernarg_size 88
  .amdhsa_user_sgpr_count 2
  .amdhsa_user_sgpr_kernarg_segment_ptr 1
  .amdhsa_system_sgpr_workgroup_id_x 1
.end_amdhsa_kernel
'''

def main():
    hdr = open(f'cdna_kernels/{NAME}.s.ref').read().split('\n')
    hdr = [l for l in hdr if l.startswith(';') and '@launch' not in l]
    out = '\n'.join(hdr) + '\n'
    out += f'; @launch kernel=k1_kernel grid=(256,1,1) block=(512,1,1) lds={G1_LDS}\n'
    out += f'; @launch kernel=k2_kernel grid=(256,1,1) block=(512,1,1) lds={G1_LDS}\n'
    out += f'; @launch kernel=k3_kernel grid=(256,1,1) block=(256,1,1) lds={K3_LDS}\n'
    out += f'; @launch kernel=k4_kernel grid=(256,1,1) block=(256,1,1) lds={K4_LDS}\n'
    out += '.amdgcn_target "amdgcn-amd-amdhsa--gfx950"\n.text\n'
    for nm, fn in (('k1_kernel', gen_k1), ('k2_kernel', gen_k2), ('k3_kernel', gen_k3), ('k4_kernel', gen_k4)):
        A = Asm()
        A.st = Stamps(A, nm[:2] in STAMP)
        fn(A)
        out += f'.globl {nm}\n.p2align 8\n.type {nm},@function\n'
        out += A.render()
    out += '.section .rodata,"a"\n.p2align 6\n'
    out += kd('k1_kernel', 256, 256)
    out += kd('k2_kernel', 256, 256)
    out += kd('k3_kernel', 512, 256)
    out += kd('k4_kernel', 512, 256)
    open(os.environ.get('OUT', f'cdna_kernels/{NAME}.s'), 'w').write(out)

if __name__ == '__main__':
    main()
```

```python
import re

TRANS = ('v_exp_f32', 'v_rcp_f32', 'v_sqrt_f32', 'v_rsq_f32', 'v_log_f32', 'v_sin_f32', 'v_cos_f32')

def _split_ops(s):
    out, depth, cur = [], 0, ''
    for ch in s:
        if ch in '[(':
            depth += 1
        elif ch in '])':
            depth -= 1
        if ch == ',' and depth == 0:
            out.append(cur.strip()); cur = ''
        else:
            cur += ch
    if cur.strip():
        out.append(cur.strip())
    return out

_REG = re.compile(r'^(?:-|\|)?(?:abs\()?([vas])(\d+|\[(\d+):(\d+)\])\)?\|?$')

def regs_of(op):
    op = op.strip()
    tok = op.split()[0] if op else ''
    if tok in ('vcc', 'exec', 'm0', 'scc'):
        return {tok}
    if tok in ('vcc_lo', 'vcc_hi'):
        return {'vcc'}
    m = _REG.match(tok)
    if not m:
        return set()
    k = m.group(1)
    if m.group(3) is not None:
        return {f'{k}{i}' for i in range(int(m.group(3)), int(m.group(4)) + 1)}
    return {f'{k}{m.group(2)}'}

class Ins:
    __slots__ = ('text', 'mn', 'kind', 'w', 'r', 'cond', 'states', 'srcc', 'passes', 'dpp', 'wide')

def parse(text, cond):
    I = Ins(); I.text = text; I.cond = cond; I.states = 1; I.srcc = set(); I.passes = 0; I.dpp = False; I.wide = False
    t = text.split(';')[0].strip()
    parts = t.split(None, 1)
    mn = parts[0]; I.mn = mn
    ops = _split_ops(parts[1]) if len(parts) > 1 else []
    R = lambda idxs: set().union(*[regs_of(ops[i]) for i in idxs if i < len(ops)]) if idxs else set()
    n = len(ops)
    I.w, I.r = set(), set()
    if mn.endswith(':'):
        I.kind = 'label'; I.states = 0
    elif mn == 's_nop':
        I.kind = 'nop'; I.states = int(ops[0], 0) + 1
    elif mn.startswith('v_mfma'):
        I.kind = 'mfma'; I.w = R([0]); I.r = R([1, 2, 3]); I.srcc = R([3])
        I.passes = 8 if '32x32x16' in mn else 4
    elif mn.startswith('v_'):
        I.kind = 'trans' if mn.split('_e32')[0] in TRANS else 'valu'
        I.dpp = ('dpp' in mn) or any(x in t for x in ('quad_perm', 'row_shr', 'row_ror', 'row_mirror', 'row_half_mirror', 'row_bcast', 'row_newbcast', 'row_shl'))
        if mn.startswith('v_permlane'):
            I.w = R([0, 1]); I.r = R([0, 1])
        elif mn.startswith('v_add_co') or mn.startswith('v_sub_co') or mn.startswith('v_addc_co') or mn.startswith('v_mad_u64'):
            I.w = R([0, 1]); I.r = R(range(2, n))
        elif mn.startswith('v_cmp'):
            I.w = R([0]); I.r = R(range(1, n))
        elif mn.startswith('v_fmac') or mn.startswith('v_dot2c') or mn.startswith('v_pk_fmac'):
            I.w = R([0]); I.r = R(range(0, n))
        else:
            I.w = R([0]); I.r = R(range(1, n))
        if mn.startswith('v_cndmask') and n == 3:
            I.r |= {'vcc'}
    elif mn.startswith('ds_'):
        I.kind = 'ds'
        if mn.startswith('ds_read') or mn.startswith('ds_bpermute') or mn.startswith('ds_permute') or mn.startswith('ds_swizzle'):
            I.w = R([0]); I.r = R(range(1, n))
        else:
            I.r = R(range(0, n))
    elif mn.startswith('buffer_') or mn.startswith('global_'):
        I.kind = 'vmem'
        if 'load' in mn:
            if re.search(r'\blds\b', t):
                I.r = R(range(0, n)) | {'m0'}; I.kind = 'vmem_lds'
            else:
                I.w = R([0]); I.r = R(range(1, n))
        else:
            I.r = R(range(0, n))
            I.wide = ('x4' in mn or 'x3' in mn)
    elif mn.startswith('s_'):
        I.kind = 'salu'
        if mn.startswith('s_cmp') or mn in ('s_waitcnt', 's_barrier', 's_endpgm', 's_setprio', 's_sleep') or mn.startswith('s_branch') or mn.startswith('s_cbranch'):
            I.r = R(range(0, n))
        elif mn.startswith('s_load'):
            I.kind = 'smem'; I.w = R([0]); I.r = R(range(1, n))
        else:
            I.w = R([0]); I.r = R(range(1, n))
            if 'saveexec' in mn:
                I.w |= {'exec'}
    else:
        I.kind = 'other'
    return I

class Asm:
    def __init__(self):
        self.items = []
        self.cond = False
        self.vmq = []
        self.ldq = []
    def raw(self, s):
        self.items.append(s)
    def __call__(self, text):
        for line in text.strip().split('\n'):
            line = line.strip()
            if not line or line.startswith(';'):
                continue
            if line.startswith('buffer_') and getattr(self, 'flags', None):
                ws = 's[20:23]' in line
                if 's[60:63]' in line:
                    f = ''
                elif line.startswith('buffer_load'):
                    f = self.flags['ldi'] if ws else self.flags['ldf']
                else:
                    f = self.flags['st']
                if f:
                    if line.endswith(' lds'):
                        line = line[:-4] + ' ' + f + ' lds'
                    else:
                        line = line + ' ' + f
            self.items.append(parse(line, self.cond))
    def label(self, name):
        self.items.append(parse(name + ':', self.cond))
    def vm(self, tag, text):
        self(text); self.vmq.append(tag)
    def ld(self, tag, text):
        self(text); self.ldq.append(tag)
    def _cnt(self, q, tag):
        idx = [i for i, t in enumerate(q) if t == tag]
        if not idx:
            return None
        return len(q) - 1 - idx[-1]
    def wait_vm(self, tag):
        n = self._cnt(self.vmq, tag)
        if n is None:
            return
        assert n <= 63, n
        self(f's_waitcnt vmcnt({n})')
        self.vmq = self.vmq[len(self.vmq) - n:] if n else []
    def wait_ld(self, tag):
        n = self._cnt(self.ldq, tag)
        if n is None:
            return
        n = min(n, 15)
        self(f's_waitcnt lgkmcnt({n})')
        self.ldq = self.ldq[len(self.ldq) - n:] if n else []
    def wait_ld_all(self):
        self('s_waitcnt lgkmcnt(0)'); self.ldq = []
    def wait_vm_all(self):
        self('s_waitcnt vmcnt(0)'); self.vmq = []
    def reset_counters(self):
        self.vmq = []; self.ldq = []
    def render(self):
        out = []
        hist = []
        pf = 0; pu = 0
        def need(I):
            req = 0
            for (P, f, u) in reversed(hist):
                d = (pf - f) if I.cond else (pu - u)
                if pf - f > 24:
                    break
                k = 0
                Pv = P.kind in ('valu', 'trans')
                Iv = I.kind in ('valu', 'trans')
                if Pv and I.kind == 'mfma' and (P.w & I.r):
                    k = max(k, 2)
                if P.kind == 'mfma':
                    big = 12 if P.passes == 8 else 8
                    if I.kind == 'mfma':
                        if (P.w & (I.r - I.srcc)):
                            k = max(k, big)
                        if (P.w & I.srcc) and not (P.w == I.srcc and P.passes == I.passes):
                            k = max(k, 10 if P.passes == 8 else 6)
                    elif I.kind in ('valu', 'trans', 'ds', 'vmem', 'vmem_lds'):
                        if P.w & (I.r | I.w):
                            k = max(k, big)
                    if Iv and (P.srcc & I.w):
                        k = max(k, 7 if P.passes == 8 else 3)
                if P.mn.startswith('v_dot') and (P.w & (I.r | I.w)):
                    if not (I.mn == P.mn and I.w == P.w and len(I.r & P.w) == 1 and I.text.split(';')[0].strip().endswith(list(P.w)[0])
                            and I.text.count(list(P.w)[0] + ',') == 1):
                        k = max(k, 3)
                if Pv:
                    sw = {x for x in P.w if x[0] == 's' or x == 'vcc'}
                    if sw:
                        if Iv and (sw & I.r):
                            k = max(k, 2)
                        if I.kind in ('vmem', 'vmem_lds') and (sw & I.r):
                            k = max(k, 5)
                        if I.kind in ('salu', 'smem') and (sw & I.r):
                            k = max(k, 2)
                    if P.kind == 'trans' and I.kind in ('valu', 'mfma') and (P.w & I.r):
                        k = max(k, 1)
                    if Iv and (P.w & I.r):
                        if I.dpp or I.mn.startswith('v_permlane'):
                            k = max(k, 2)
                        if I.mn.startswith('v_readfirstlane') or I.mn.startswith('v_readlane'):
                            k = max(k, 1)
                    if 'exec' in P.w:
                        k = max(k, 5)
                if P.kind == 'salu' and 'm0' in P.w and I.kind == 'vmem_lds':
                    k = max(k, 1)
                if P.kind == 'vmem' and P.wide and (P.r & I.w):
                    k = max(k, 2)
                if k - d > req:
                    req = k - d
            return req
        for it in self.items:
            if isinstance(it, str):
                out.append(it); continue
            if it.kind == 'label':
                out.append(it.text); continue
            r = need(it)
            if r > 0:
                nop = parse(f's_nop {r - 1}', it.cond)
                out.append('    ' + nop.text + '    ; hazard pad')
                pf += r
                if not it.cond:
                    pu += r
            out.append('    ' + it.text)
            pf += it.states
            if not it.cond:
                pu += it.states
            hist.append((it, pf, pu))
            if len(hist) > 64:
                hist = hist[-48:]
        return '\n'.join(out) + '\n'
```

```python
import sys, struct
sys.path.insert(0, 'gen')
from dsl import Asm

NAME = 'parallel_sum__linear_attn_block__mixer_gmlp__prompt'

T1   = 0
PQ   = 8388608
Z1   = PQ + 2621440
Z2NT = Z1 + 3145728
KVT  = Z2NT + 3145728
ZP   = KVT + 65536
WT   = KVT + 131072
OH   = 19398656
STATS = OH + 5767168
WS_END = STATS + 16384

def f32(x):
    return '0x%08x' % struct.unpack('<I', struct.pack('<f', x))[0]

LOG2E = 1.4426950408889634
KBETA = 0.7978845608028654
KKAPPA = 0.044715

def srd(A, d, b, nbytes):
    A(f's_mov_b32 s{d}, s{b}')
    A(f's_and_b32 s{d+1}, s{b+1}, 0xffff')
    A(f's_mov_b32 s{d+2}, {nbytes}')
    A(f's_mov_b32 s{d+3}, 0x00020000')

import os
STAMP = os.environ.get('STAMP', '')
STAMP_BASE = 32 << 20
class Stamps:
    def __init__(self, A, on):
        self.A = A; self.on = on; self.n = 0
    def __call__(self):
        if not self.on: return
        A = self.A
        A(f's_memtime s[{64+2*self.n}:{65+2*self.n}]')
        if self.n == 0:
            A('s_memrealtime s[96:97]')
        A('s_waitcnt lgkmcnt(0)')
        A.ldq = []
        self.n += 1
    def flush(self, nwaves, kidx):
        if not self.on: return
        A = self.A
        A('s_waitcnt vmcnt(0)')
        A('s_memrealtime s[98:99]')
        self()
        A(f'''
        s_mov_b32 s60, s10
        s_and_b32 s61, s11, 0xffff
        s_mov_b32 s62, {64<<20}
        s_mov_b32 s63, 0x00020000
        s_lshl_b32 s33, s2, 3
        s_add_u32 s33, s33, s28
        s_lshl_b32 s33, s33, 7
        s_add_u32 s33, s33, {STAMP_BASE + (kidx<<20)}
        v_mov_b32 v4, 0
        ''')
        for i in range(self.n):
            A(f'v_mov_b32 v6, s{64+2*i}')
            A(f'v_mov_b32 v7, s{65+2*i}')
            A(f'buffer_store_dwordx2 v[6:7], v4, s[60:63], s33 offen offset:{8*i}')
            A('s_nop 1')
        A('s_getreg_b32 s94, hwreg(HW_REG_XCC_ID)')
        A('s_getreg_b32 s95, hwreg(HW_REG_HW_ID)')
        A('v_mov_b32 v6, s94')
        A('v_mov_b32 v7, s95')
        A(f'buffer_store_dwordx2 v[6:7], v4, s[60:63], s33 offen offset:104')
        A('s_nop 1')
        for i in range(2):
            A(f'v_mov_b32 v6, s{96+2*i}')
            A(f'v_mov_b32 v7, s{97+2*i}')
            A(f'buffer_store_dwordx2 v[6:7], v4, s[60:63], s33 offen offset:{112+8*i}')
            A('s_nop 1')

def rnd_pair(A, p, a, b):
    A(f'v_cvt_pk_bf16_f32 v{p}, v{a}, v{b}')
    A(f'v_lshlrev_b32 v{a}, 16, v{p}')
    A(f'v_and_b32 v{b}, 0xffff0000, v{p}')

G1_STAGE = 32768
G1_MB = 4 * G1_STAGE
G1_RI = G1_MB + 512
G1_CP = G1_RI + 512
G1_RP = G1_CP + 1024
G1_LDS = G1_RP + 4096

ACC = 32
FX = lambda b, ks, i: 64 + 48 * b + 12 * ks + 4 * i
FW = lambda b, ks: 64 + 48 * b + 12 * ks + 8
VA = lambda s, ks: 160 + 4 * s + ks
VB = lambda s, ks: 168 + 4 * s + ks
VOA = 176; VOB = 178
RS = 180
CS, ONES = 184, 185
MBR = 186
T0 = 64

def vr(b, n=4):
    return f'v[{b}:{b+n-1}]'

def g1_dma_setup(A):
    A("""
    v_and_b32 v1, 63, v0
    v_lshrrev_b32 v5, 3, v1
    s_lshl_b32 s33, s24, 7
    s_lshl_b32 s34, s28, 4
    s_add_u32 s33, s33, s34
    v_add_u32 v5, s33, v5
    s_movk_i32 s34, 1280
    v_mul_lo_u32 v5, v5, s34
    v_lshrrev_b32 v6, 4, v1
    v_and_b32 v7, 7, v1
    v_xor_b32 v8, v7, v6
    v_lshlrev_b32 v8, 4, v8
    """)
    A(f'v_add_u32 v{VOA}, v5, v8')
    A("""
    v_add_u32 v6, 4, v6
    v_xor_b32 v8, v7, v6
    v_lshlrev_b32 v8, 4, v8
    v_add_u32 v8, v5, v8
    """)
    A(f'v_add_u32 v{VOA+1}, {8*1280-1024}, v8')
    g1_dma_b_setup(A)

def g1_lane_setup(A):
    A("""
    v_and_b32 v2, 31, v1
    v_lshrrev_b32 v3, 5, v1
    v_lshrrev_b32 v4, 1, v1
    v_and_b32 v4, 7, v4
    v_xor_b32 v4, v3, v4
    v_lshlrev_b32 v4, 4, v4
    v_lshlrev_b32 v5, 7, v2
    v_add_u32 v4, v4, v5
    s_lshl_b32 s33, s29, 13
    v_add_u32 v4, s33, v4
    s_xor_b32 s31, s30, s29
    s_lshl_b32 s33, s31, 5
    v_xor_b32 v4, s33, v4
    """)
    for ks in range(4):
        A(f'v_xor_b32 v{VA(0,ks)}, {ks<<5}, v4')
        A(f'v_add_u32 v{VA(1,ks)}, 0x10000, v{VA(0,ks)}')
    A("""
    v_and_b32 v5, 15, v1
    v_lshrrev_b32 v5, 2, v5
    v_and_b32 v6, 3, v1
    v_lshlrev_b32 v7, 3, v3
    v_add_u32 v7, v7, v5
    v_lshlrev_b32 v7, 8, v7
    v_xor_b32 v8, s30, v5
    v_lshlrev_b32 v8, 6, v8
    v_add_u32 v7, v7, v8
    v_lshrrev_b32 v8, 4, v1
    v_and_b32 v8, 1, v8
    v_lshlrev_b32 v8, 5, v8
    v_add_u32 v7, v7, v8
    v_lshlrev_b32 v6, 3, v6
    v_add_u32 v7, v7, v6
    s_lshl_b32 s33, s31, 12
    s_add_u32 s33, s33, 0x4000
    """)
    for ks in range(4):
        A(f's_xor_b32 s34, s33, {ks<<12}')
        A(f'v_add_u32 v{VB(0,ks)}, s34, v7')
        A(f'v_add_u32 v{VB(1,ks)}, 0x10000, v{VB(0,ks)}')

def g1_dma_b_setup(A):
    A("""
    v_lshrrev_b32 v6, 4, v1
    s_lshl_b32 s33, s28, 3
    v_add_u32 v5, s33, v6
    v_mul_lo_u32 v5, v5, s26
    v_and_b32 v7, 15, v1
    v_lshrrev_b32 v7, 2, v7
    v_xor_b32 v7, v7, v6
    v_lshlrev_b32 v7, 2, v7
    v_and_b32 v8, 3, v1
    v_add_u32 v7, v7, v8
    v_lshlrev_b32 v7, 4, v7
    v_add_u32 v5, v5, v7
    """)
    A(f'v_add_u32 v{VOB}, s27, v5')
    A("""
    s_lshl_b32 s33, s26, 2
    s_sub_u32 s33, s33, 1024
    """)
    A(f'v_add_u32 v{VOB+1}, s33, v{VOB}')

def g1_dma(A, c, half=None):
    st = c % 4
    if half in (None, 0):
        A(f's_add_u32 s48, s32, {c}')
        A(f's_sub_u32 s49, s48, 10')
        A(f's_cmp_ge_u32 s48, 10')
        A(f's_cselect_b32 s48, s49, s48')
        A(f's_add_u32 m0, s35, {st*G1_STAGE}')
        A(f's_lshl_b32 s36, s48, 7')
        A.vm(('dma', c), f'buffer_load_dwordx4 v{VOA}, s[12:15], s36 offen lds')
        A.vm(('dma', c), f'buffer_load_dwordx4 v{VOA+1}, s[12:15], s36 offen offset:1024 lds')
    if half in (None, 1):
        A(f's_add_u32 m0, s35, {st*G1_STAGE+16384}')
        A(f's_mul_i32 s37, s38, s48')
        A.vm(('dma', c), f'buffer_load_dwordx4 v{VOB}, s[16:19], s37 offen lds')
        A.vm(('dma', c), f'buffer_load_dwordx4 v{VOB+1}, s[16:19], s37 offen offset:1024 lds')

def g1_read_list(c):
    st = c % 4; s = st >> 1; o = (st & 1) * G1_STAGE
    b = c & 1
    L = []
    for ks in range(4):
        L.append(f'ds_read_b128 {vr(FX(b,ks,0))}, v{VA(s,ks)} offset:{o}')
        L.append(f'ds_read_b64_tr_b16 {vr(FW(b,ks),2)}, v{VB(s,ks)} offset:{o}')
        L.append(f'ds_read_b64_tr_b16 {vr(FW(b,ks)+2,2)}, v{VB(s,ks)} offset:{o + 1024}')
        L.append(f'ds_read_b128 {vr(FX(b,ks,1))}, v{VA(s,ks)} offset:{o + 4096}')
    return L

def g1_touch(A, name, nb):
    if not os.environ.get('G1TOUCH'):
        return
    A(f"""
    s_cmp_lt_u32 s28, 3
    s_cbranch_scc0 {name}_tb
    v_and_b32 v4, 15, v1
    s_lshl_b32 s33, s24, 7
    s_lshl_b32 s34, s40, 4
    s_add_u32 s33, s33, s34
    v_add_u32 v4, s33, v4
    s_movk_i32 s34, 1280
    v_mul_lo_u32 v4, v4, s34
    v_lshrrev_b32 v5, 4, v1
    v_lshlrev_b32 v5, 7, v5
    v_add_u32 v4, v4, v5
    s_lshl_b32 s33, s28, 9
    buffer_load_dword v8, v4, s[12:15], s33 offen
    """)
    for q in range(1, nb):
        A('buffer_load_dword v8, v4, s[12:15], s33 offen')
    A(f's_branch {name}_td')
    A.label(f'{name}_tb')
    A(f"""
    v_lshrrev_b32 v4, 1, v1
    s_lshl_b32 s33, s28, 5
    s_mul_i32 s34, s41, {160*nb}
    s_add_u32 s33, s33, s34
    s_sub_u32 s33, s33, 96
    v_add_u32 v4, s33, v4
    v_mul_lo_u32 v4, v4, s26
    v_and_b32 v5, 1, v1
    v_lshlrev_b32 v5, 7, v5
    v_add_u32 v4, v4, v5
    s_mul_i32 s33, s26, 160
    s_add_u32 s33, s33, s27
    buffer_load_dword v8, v4, s[16:19], s27 offen
    """)
    for q in range(1, nb):
        A('buffer_load_dword v9, v4, s[16:19], s33 offen')
    A.label(f'{name}_td')
    A.vmq += ['t'] * nb

def g1_mainloop(A, swapped, rowstats, hook=None):
    NC = 10
    for i in range(4):
        A(f'v_mov_b32 v{RS+i}, 0')
    A(f'v_mov_b32 v{CS}, 0')
    A(f'v_mov_b32 v{ONES}, 0x3f803f80')
    A.st()
    A.wait_vm(('dma', 0))
    A('s_barrier')
    A.st()
    for r in g1_read_list(0):
        A.ld('fr', r)
    for c in range(NC):
        b = c & 1
        A.wait_ld_all()
        RL = []
        if c < NC - 1:
            A.wait_vm(('dma', c + 1))
            A('s_barrier')
            if c in (0, 2, 5, 8):
                A.st()
            RL = g1_read_list(c + 1)
        dots = []
        for j in range(4):
            dots.append(f'v_dot2_f32_bf16 v{CS}, v{FW(b,0)+j}, v{ONES}, v{CS}')
            if rowstats:
                for i in range(2):
                    dots.append(f'v_dot2_f32_bf16 v{RS+2*i}, v{FX(b,0,i)+j}, v{ONES}, v{RS+2*i}')
                    dots.append(f'v_dot2_f32_bf16 v{RS+2*i+1}, v{FX(b,0,i)+j}, v{FX(b,0,i)+j}, v{RS+2*i+1}')
            dots.append(f'v_dot2_f32_bf16 v{CS}, v{FW(b,2)+j}, v{ONES}, v{CS}')
        per = (len(dots) + 7) // 8
        for ks in range(4):
            for i in range(2):
                cin = '0' if (c == 0 and ks == 0) else vr(ACC+16*i,16)
                if swapped:
                    A(f'v_mfma_f32_32x32x16_bf16 {vr(ACC+16*i,16)}, {vr(FW(b,ks))}, {vr(FX(b,ks,i))}, {cin}')
                else:
                    A(f'v_mfma_f32_32x32x16_bf16 {vr(ACC+16*i,16)}, {vr(FX(b,ks,i))}, {vr(FW(b,ks))}, {cin}')
                for r in RL[:2]:
                    A.ld('fr', r)
                RL = RL[2:]
                n8 = 2 * ks + i
                todo = [2, 3] if c == 0 else ([c + 3] if c + 3 < NC else [])
                for ti, cc in enumerate(todo):
                    if n8 == 4 * ti:
                        g1_dma(A, cc, 0)
                    if n8 == 4 * ti + 2:
                        g1_dma(A, cc, 1)
                if n8 == 5 and hook is not None:
                    hook(c)
                for d in dots[:per]:
                    A(d)
                dots = dots[per:]
        assert not RL and not dots
    A.st()

def pk(op, d, a, b, c=None, neg0=False):
    t = f'v_pk_{op}_f32 v[{d}:{d+1}], v[{a}:{a+1}], v[{b}:{b+1}]'
    if c is not None:
        t += f', v[{c}:{c+1}]'
    if neg0:
        t += ' neg_lo:[1,0,0] neg_hi:[1,0,0]'
    return t

KC = 240
def epi_consts(A):
    vals = [1.0, LOG2E, 1e-6, KKAPPA, -2 * KBETA * LOG2E]
    for i, v in enumerate(vals):
        A(f'v_mov_b32 v{KC+2*i}, {f32(v)}')
        A(f'v_mov_b32 v{KC+2*i+1}, {f32(v)}')
C_ONE, C_L2E, C_EPS, C_KAP, C_CG = KC, KC + 2, KC + 4, KC + 6, KC + 8

def act_code(A, kind, regs, tmp):
    R0 = regs[0]
    P = tmp; OUT = tmp + 8; E = tmp + 16; G = tmp + 32
    if kind == 'plain':
        for k in range(8):
            A(f'v_cvt_pk_bf16_f32 v{OUT+k}, v{R0+2*k}, v{R0+2*k+1}')
        return OUT
    for k in range(8):
        A(f'v_cvt_pk_bf16_f32 v{P+k}, v{R0+2*k}, v{R0+2*k+1}')
    for k in range(8):
        A(f'v_lshlrev_b32 v{R0+2*k}, 16, v{P+k}')
        A(f'v_and_b32 v{R0+2*k+1}, 0xffff0000, v{P+k}')
    if kind == 'phi':
        for k in range(8):
            A(pk('mul', E + 2 * k, R0 + 2 * k, C_L2E))
        for k in range(16):
            A(f'v_exp_f32 v{E+k}, v{E+k}')
        for k in range(8):
            A(pk('add', G + 2 * k, R0 + 2 * k, C_ONE))
        for k in range(8):
            A(f'v_cvt_pk_bf16_f32 v{P+k}, v{E+2*k}, v{E+2*k+1}')
        for k in range(8):
            A(f'v_lshlrev_b32 v{E+2*k}, 16, v{P+k}')
            A(f'v_and_b32 v{E+2*k+1}, 0xffff0000, v{P+k}')
        for k in range(8):
            A(pk('add', E + 2 * k, E + 2 * k, C_EPS))
        for k0 in range(0, 16, 4):
            for k in range(k0, k0 + 4):
                A(f'v_cmp_lt_f32 s[{52+2*(k-k0)}:{53+2*(k-k0)}], 0, v{R0+k}')
            for k in range(k0, k0 + 4):
                A(f'v_cndmask_b32 v{E+k}, v{E+k}, v{G+k}, s[{52+2*(k-k0)}:{53+2*(k-k0)}]')
        for k in range(8):
            A(f'v_cvt_pk_bf16_f32 v{OUT+k}, v{E+2*k}, v{E+2*k+1}')
        return OUT
    if kind == 'gelu':
        for k in range(8):
            A(pk('mul', E + 2 * k, R0 + 2 * k, R0 + 2 * k))
        for k in range(8):
            A(pk('mul', G + 2 * k, R0 + 2 * k, C_CG))
        for k in range(8):
            A(pk('fma', E + 2 * k, E + 2 * k, C_KAP, C_ONE))
        for k in range(8):
            A(pk('mul', E + 2 * k, E + 2 * k, G + 2 * k))
        for k in range(16):
            A(f'v_exp_f32 v{E+k}, v{E+k}')
        for k in range(8):
            A(pk('add', E + 2 * k, E + 2 * k, C_ONE))
        for k in range(16):
            A(f'v_rcp_f32 v{E+k}, v{E+k}')
        for k in range(8):
            A(pk('mul', E + 2 * k, E + 2 * k, R0 + 2 * k))
        for k in range(8):
            A(f'v_cvt_pk_bf16_f32 v{OUT+k}, v{E+2*k}, v{E+2*k+1}')
        return OUT
    raise ValueError(kind)

def swap_store(A, OUT, voff, srd_, soff, imm0, gstep=32):
    for gp in range(2):
        b = OUT + 4 * gp
        A(f'v_permlane32_swap_b32 v{b}, v{b+2}')
        A(f'v_permlane32_swap_b32 v{b+1}, v{b+3}')
    for gp in range(2):
        b = OUT + 4 * gp
        A.vm('st', f'buffer_store_dwordx4 {vr(b)}, v{voff}, s[{srd_}:{srd_+3}], s{soff} offen offset:{imm0 + gstep*gp}')

def k1_epilogue(A, kind):
    CS2 = T0 + 6
    MBS = [T0 + 8, T0 + 40]; RIS = [T0 + 24, T0 + 56]; TMP = T0 + 72
    for i in range(2):
        for g in range(4):
            A.ld(('mb', i), f'ds_read_b128 {vr(MBS[i]+4*g)}, v{T0+4} offset:{(32*i+8*g)*4}')
            A.ld(('mb', i), f'ds_read_b128 {vr(RIS[i]+4*g)}, v{T0+4} offset:{512+(32*i+8*g)*4}')
    for i in range(2):
        A.wait_ld(('mb', i))
        regs = [ACC + 16 * i + k for k in range(16)]
        for k in range(8):
            A(pk('fma', regs[2*k], MBS[i] + 2 * k, CS2, regs[2*k], neg0=True))
        for k in range(8):
            A(pk('mul', regs[2*k], regs[2*k], RIS[i] + 2 * k))
        OUT = act_code(A, kind, regs, TMP + 48 * i if kind != 'x' else TMP)
        if kind == 'gelu':
            swap_store(A, OUT, T0 + 5, 20, 39, 64 * i)
        else:
            swap_store(A, OUT, T0 + 2, 20, 42, 1024 * i, 512)

def g1_entry(A, done_lbl):
    A(f"""
    s_cmp_ge_u32 s2, 256
    s_cbranch_scc1 {done_lbl}
    s_load_dwordx4 s[4:7], s[0:1], 0
    s_load_dwordx2 s[8:9], s[0:1], 32
    s_load_dwordx2 s[10:11], s[0:1], 80
    v_lshrrev_b32 v2, 6, v0
    s_nop 0
    v_readfirstlane_b32 s28, v2
    """)

def gen_k1(A):
    A.label('k1_kernel')
    A.st()
    g1_entry(A, 'k1_done')
    A("""
    s_and_b32 s33, s2, 7
    s_lshr_b32 s34, s2, 3
    s_lshr_b32 s24, s33, 1
    s_lshl_b32 s24, s24, 2
    s_lshr_b32 s41, s34, 3
    s_add_u32 s24, s24, s41
    s_and_b32 s25, s33, 1
    s_lshl_b32 s25, s25, 3
    s_and_b32 s40, s34, 7
    s_add_u32 s25, s25, s40
    s_lshr_b32 s29, s28, 2
    s_and_b32 s30, s28, 3
    s_movk_i32 s26, 3840
    s_mov_b32 s18, 2457600
    s_movk_i32 s33, 1280
    s_cmp_lt_u32 s25, 10
    s_cselect_b32 s26, s26, 3072
    s_cselect_b32 s18, s18, 1966080
    s_cselect_b32 s33, s33, -1024
    s_lshl_b32 s27, s25, 8
    s_add_i32 s27, s27, s33
    s_mov_b32 s19, 0x00020000
    s_lshl_b32 s35, s28, 11
    s_lshl_b32 s38, s26, 6
    s_lshr_b32 s32, s2, 3
    s_mul_i32 s33, s32, 6554
    s_lshr_b32 s33, s33, 16
    s_mul_i32 s33, s33, 10
    s_sub_u32 s32, s32, s33
    """)
    if os.environ.get('NOG1ROT'):
        A('s_mov_b32 s32, 0')
    g1_dma_setup(A)
    A("""
    s_waitcnt lgkmcnt(0)
    s_cmp_lt_u32 s25, 10
    s_cselect_b32 s16, s6, s8
    s_cselect_b32 s17, s7, s9
    s_and_b32 s17, s17, 0xffff
    """)
    srd(A, 12, 4, 2048 * 1280)
    g1_touch(A, 'k1', 1)
    for c in range(2):
        g1_dma(A, c)
    srd(A, 20, 10, WS_END)
    g1_lane_setup(A)
    epi_consts(A)
    def k1_hook(c):
        if os.environ.get('NOPF') or c not in (6, 7):
            return
        if c == 6:
            A('s_load_dwordx2 s[56:57], s[0:1], 40')
            return
        if os.environ.get('K1WSP', '1') == '1':
            A(f"""
            s_lshl_b32 s42, s2, 3
            s_add_u32 s42, s42, s28
            s_lshl_b32 s42, s42, 12
            v_and_b32 v5, 31, v1
            v_lshlrev_b32 v5, 7, v5
            s_and_b32 s57, s57, 0xffff
            s_mov_b32 s58, {2048*4096}
            s_mov_b32 s59, 0x00020000
            """)
            A.vm('pf', 'buffer_load_dword v8, v5, s[56:59], s42 offen')
        A(f"""
        s_lshr_b32 s42, s2, 3
        s_mul_i32 s42, s42, 20
        s_and_b32 s43, s28, 3
        s_lshl_b32 s43, s43, 6
        v_add_u32 v4, s43, v1
        v_lshrrev_b32 v5, 4, v4
        v_and_b32 v6, 15, v4
        s_cmp_lt_u32 s28, 4
        s_cselect_b32 s44, s6, s8
        s_cselect_b32 s45, s7, s9
        s_movk_i32 s43, 3840
        s_mov_b32 s46, 2457600
        s_cselect_b32 s43, s43, 3072
        s_cselect_b32 s46, s46, 1966080
        s_and_b32 s45, s45, 0xffff
        s_mov_b32 s47, 0x00020000
        v_add_u32 v5, s42, v5
        v_mul_lo_u32 v5, v5, s43
        v_min_u32 v6, 11, v6
        v_lshl_add_u32 v5, v6, 7, v5
        s_lshl_b32 s43, s43, 4
        """)
        A.vm('pf', 'buffer_load_dword v8, v5, s[44:47], 0 offen')
        A.vm('pf', 'buffer_load_dword v8, v5, s[44:47], s43 offen')
    g1_mainloop(A, swapped=False, rowstats=True, hook=k1_hook)
    p = T0
    for r in (RS, RS + 1, RS + 2, RS + 3, CS):
        A(f'v_mov_b32 v{p}, v{r}')
        A(f'v_permlane32_swap_b32 v{r}, v{p}')
        A(f'v_add_f32 v{r}, v{r}, v{p}')
    A(f"""
    s_lshl_b32 s33, s30, 10
    s_lshl_b32 s34, s29, 9
    s_add_u32 s33, s33, s34
    s_add_u32 s33, s33, {G1_RP}
    v_lshlrev_b32 v{T0+1}, 3, v2
    v_add_u32 v{T0+1}, s33, v{T0+1}
    ds_write_b64 v{T0+1}, v[{RS}:{RS+1}]
    ds_write_b64 v{T0+1}, v[{RS+2}:{RS+3}] offset:256
    s_lshl_b32 s33, s30, 7
    s_add_u32 s33, s33, {G1_CP}
    v_lshlrev_b32 v{T0+2}, 2, v2
    v_add_u32 v{T0+2}, s33, v{T0+2}
    s_lshl_b32 s34, s29, 9
    v_add_u32 v{T0+3}, s34, v{T0+2}
    ds_write_b32 v{T0+3}, v{CS}
    s_waitcnt lgkmcnt(0)
    s_barrier
    ds_read_b32 v{T0+6}, v{T0+2}
    ds_read_b32 v{T0+7}, v{T0+2} offset:512
    s_cmp_lt_u32 s28, 2
    s_cbranch_scc0 k1_nofin
    v_lshlrev_b32 v{T0+1}, 3, v0
    v_add_u32 v{T0+1}, {G1_RP}, v{T0+1}
    ds_read_b64 v[{T0+8}:{T0+9}], v{T0+1}
    ds_read_b64 v[{T0+10}:{T0+11}], v{T0+1} offset:1024
    ds_read_b64 v[{T0+12}:{T0+13}], v{T0+1} offset:2048
    ds_read_b64 v[{T0+14}:{T0+15}], v{T0+1} offset:3072
    s_waitcnt lgkmcnt(0)
    v_pk_add_f32 v[{T0+8}:{T0+9}], v[{T0+8}:{T0+9}], v[{T0+10}:{T0+11}]
    v_pk_add_f32 v[{T0+12}:{T0+13}], v[{T0+12}:{T0+13}], v[{T0+14}:{T0+15}]
    v_pk_add_f32 v[{T0+8}:{T0+9}], v[{T0+8}:{T0+9}], v[{T0+12}:{T0+13}]
    """)
    a, b_, pp = T0 + 8, T0 + 9, T0 + 10
    A(f'v_mul_f32 v{a}, {f32(1/640)}, v{a}')
    A(f'v_mul_f32 v{b_}, {f32(1/640)}, v{b_}')
    A(f'v_fma_f32 v{b_}, -v{a}, v{a}, v{b_}')
    A(f'v_max_f32 v{b_}, 0, v{b_}')
    rnd_pair(A, pp, a, b_)
    A(f'v_add_f32 v{b_}, {f32(1e-5)}, v{b_}')
    A(f'v_cvt_pk_bf16_f32 v{pp}, v{b_}, v{b_}')
    A(f'v_lshlrev_b32 v{b_}, 16, v{pp}')
    A(f'v_sqrt_f32 v{b_}, v{b_}')
    A(f'v_cvt_pk_bf16_f32 v{pp}, v{b_}, v{b_}')
    A(f'v_lshlrev_b32 v{b_}, 16, v{pp}')
    A(f'v_rcp_f32 v{b_}, v{b_}')
    A(f"""
    v_lshlrev_b32 v{T0+1}, 2, v0
    v_add_u32 v{T0+11}, {G1_MB}, v{T0+1}
    ds_write_b32 v{T0+11}, v{a}
    ds_write_b32 v{T0+11}, v{b_} offset:512
    s_cmp_lg_u32 s25, 0
    s_cbranch_scc1 k1_nofin
    v_lshlrev_b32 v{T0+1}, 3, v0
    s_lshl_b32 s33, s24, 10
    s_add_u32 s33, s33, {STATS}
    buffer_store_dwordx2 v[{a}:{b_}], v{T0+1}, s[20:23], s33 offen
    """)
    A.label('k1_nofin')
    A(f"""
    s_waitcnt lgkmcnt(0)
    v_add_f32 v{T0+6}, v{T0+6}, v{T0+7}
    s_lshl_b32 s33, s29, 6
    v_lshlrev_b32 v{T0+4}, 2, v3
    v_add_u32 v{T0+4}, s33, v{T0+4}
    v_lshlrev_b32 v{T0+4}, 2, v{T0+4}
    v_add_u32 v{T0+4}, {G1_MB}, v{T0+4}
    v_mov_b32 v{T0+7}, v{T0+6}
    s_lshl_b32 s34, s30, 5
    v_add_u32 v{T0+5}, s34, v2
    v_lshlrev_b32 v{T0+5}, 12, v{T0+5}
    v_lshlrev_b32 v{T0+1}, 3, v3
    v_add_u32 v{T0+1}, s33, v{T0+1}
    v_lshlrev_b32 v{T0+1}, 1, v{T0+1}
    v_add_u32 v{T0+5}, v{T0+5}, v{T0+1}
    s_lshl_b32 s39, s25, 19
    s_lshl_b32 s33, s24, 12
    s_add_u32 s42, s39, s33
    s_lshl_b32 s33, s24, 8
    s_add_u32 s39, s39, s33
    v_lshrrev_b32 v{T0+2}, 4, v1
    v_and_b32 v{T0+2}, 1, v{T0+2}
    s_lshl_b32 s33, s30, 1
    v_add_u32 v{T0+2}, s33, v{T0+2}
    v_lshlrev_b32 v{T0+2}, 16, v{T0+2}
    v_and_b32 v{T0+1}, 15, v1
    v_lshl_add_u32 v{T0+2}, v{T0+1}, 4, v{T0+2}
    v_lshl_add_u32 v{T0+2}, v3, 8, v{T0+2}
    s_lshl_b32 s33, s29, 11
    v_add_u32 v{T0+2}, s33, v{T0+2}
    s_barrier
    s_cmp_lt_u32 s25, 5
    s_cbranch_scc1 k1_phi
    s_cmp_lt_u32 s25, 10
    s_cbranch_scc1 k1_plain
    """)
    A.reset_counters()
    A.st()
    k1_epilogue(A, 'gelu')
    n0 = A.st.n
    A.st.flush(8, 0)
    A.st.n = n0 - 1
    A('s_endpgm')
    A.label('k1_phi')
    A('s_nop 4')
    A.reset_counters()
    A.st()
    k1_epilogue(A, 'phi')
    A.st.flush(8, 0)
    A.st.n = n0 - 1
    A('s_endpgm')
    A.label('k1_plain')
    A('s_nop 4')
    A.reset_counters()
    A.st()
    k1_epilogue(A, 'plain')
    A.st.flush(8, 0)
    A.label('k1_done')
    A('s_endpgm')

def k2_epilogue(A, kind):
    CS4 = T0 + 8; CS4B = T0 + 24; MB2 = T0 + 40; TMP = T0 + 48
    for g in range(4):
        A.ld('cs', f'ds_read_b128 {vr(CS4+4*g)}, v{T0+4} offset:{32*g}')
        A.ld('cs', f'ds_read_b128 {vr(CS4B+4*g)}, v{T0+4} offset:{512+32*g}')
    A.wait_vm('stats')
    for i in range(2):
        A(f'v_mov_b32 v{MB2+4*i}, v{MBR+2*i}')
        A(f'v_mov_b32 v{MB2+4*i+1}, v{MBR+2*i}')
        A(f'v_mov_b32 v{MB2+4*i+2}, v{MBR+2*i+1}')
        A(f'v_mov_b32 v{MB2+4*i+3}, v{MBR+2*i+1}')
    A.wait_ld_all()
    for k in range(8):
        A(pk('add', CS4 + 2 * k, CS4 + 2 * k, CS4B + 2 * k))
    for i in range(2):
        regs = [ACC + 16 * i + k for k in range(16)]
        for k in range(8):
            A(pk('fma', regs[2*k], MB2 + 4 * i, CS4 + 2 * k, regs[2*k], neg0=True))
        for k in range(8):
            A(pk('mul', regs[2*k], regs[2*k], MB2 + 4 * i + 2))
        OUT = act_code(A, kind, regs, TMP + 48 * i)
        swap_store(A, OUT, T0 + 5 + (2 if i else 0), 20, 39, 0)

def gen_k2(A):
    A.label('k2_kernel')
    A.st()
    g1_entry(A, 'k2_done')
    A("""
    s_cmp_ge_u32 s2, 240
    s_cbranch_scc1 k2_wt
    s_cmp_ge_u32 s2, 208
    s_cbranch_scc1 k2_kv
    s_cmp_ge_u32 s2, 176
    s_cbranch_scc1 k2_ln
    s_and_b32 s33, s2, 7
    s_lshr_b32 s34, s2, 3
    s_lshl_b32 s24, s33, 1
    s_cmp_ge_u32 s34, 11
    s_cselect_b32 s41, 1, 0
    s_cselect_b32 s25, 11, 0
    s_add_u32 s24, s24, s41
    s_sub_u32 s25, s34, s25
    s_and_b32 s40, s25, 7
    s_lshr_b32 s29, s28, 2
    s_and_b32 s30, s28, 3
    s_movk_i32 s26, 3840
    s_mov_b32 s18, 2457600
    s_cmp_lt_u32 s25, 5
    s_cselect_b32 s26, s26, 3072
    s_cselect_b32 s18, s18, 1966080
    s_cselect_b32 s33, 0, -1280
    s_lshl_b32 s27, s25, 8
    s_add_i32 s27, s27, s33
    s_mov_b32 s19, 0x00020000
    s_lshl_b32 s35, s28, 11
    s_lshl_b32 s38, s26, 6
    s_lshr_b32 s32, s2, 3
    s_mul_i32 s33, s32, 6554
    s_lshr_b32 s33, s33, 16
    s_mul_i32 s33, s33, 10
    s_sub_u32 s32, s32, s33
    """)
    if os.environ.get('NOG1ROT'):
        A('s_mov_b32 s32, 0')
    g1_dma_setup(A)
    A("""
    s_waitcnt lgkmcnt(0)
    s_cmp_lt_u32 s25, 5
    s_cselect_b32 s16, s6, s8
    s_cselect_b32 s17, s7, s9
    s_and_b32 s17, s17, 0xffff
    """)
    srd(A, 12, 4, 2048 * 1280)
    g1_touch(A, 'k2', 2)
    for c in range(2):
        g1_dma(A, c)
    srd(A, 20, 10, WS_END)
    g1_lane_setup(A)
    A(f"""
    s_lshl_b32 s33, s24, 10
    s_lshl_b32 s34, s29, 9
    s_add_u32 s33, s33, s34
    s_add_u32 s33, s33, {STATS}
    v_lshlrev_b32 v4, 3, v2
    """)
    A.vm('stats', f'buffer_load_dwordx2 v[{MBR}:{MBR+1}], v4, s[20:23], s33 offen')
    A.vm('stats', f'buffer_load_dwordx2 v[{MBR+2}:{MBR+3}], v4, s[20:23], s33 offen offset:256')
    epi_consts(A)
    def k2_hook(c):
        if os.environ.get('NOPF') or os.environ.get('K2GPF', '1') != '1' or c not in (6, 7):
            return
        if c == 6:
            A(f"""
            s_load_dwordx2 s[44:45], s[0:1], 40
            s_and_b32 s42, s2, 7
            s_lshr_b32 s42, s42, 1
            s_lshl_b32 s42, s42, 21
            s_lshr_b32 s43, s2, 3
            s_lshl_b32 s43, s43, 3
            s_add_u32 s43, s43, s28
            s_mul_i32 s43, s43, 12288
            s_add_u32 s42, s42, s43
            v_lshlrev_b32 v5, 7, v1
            s_mov_b32 s46, {2048*4096}
            s_mov_b32 s47, 0x00020000
            """)
        else:
            A(f"""
            s_and_b32 s45, s45, 0xffff
            s_add_u32 s43, s42, 8192
            """)
            A.vm('pf', 'buffer_load_dword v8, v5, s[44:47], s42 offen')
            A.vm('pf', 'buffer_load_dword v8, v5, s[44:47], s43 offen')
    g1_mainloop(A, swapped=True, rowstats=False, hook=k2_hook)
    vq = list(A.vmq)
    A(f"""
    v_mov_b32 v{T0}, v{CS}
    v_permlane32_swap_b32 v{CS}, v{T0}
    v_add_f32 v{CS}, v{CS}, v{T0}
    s_lshl_b32 s33, s30, 7
    s_add_u32 s33, s33, {G1_CP}
    s_lshl_b32 s34, s29, 9
    s_add_u32 s34, s34, s33
    v_lshlrev_b32 v{T0+4}, 2, v2
    v_add_u32 v{T0+4}, s34, v{T0+4}
    ds_write_b32 v{T0+4}, v{CS}
    v_lshlrev_b32 v{T0+4}, 4, v3
    v_add_u32 v{T0+4}, s33, v{T0+4}
    s_lshl_b32 s33, s29, 6
    s_movk_i32 s34, 1280
    s_cmp_lt_u32 s25, 5
    s_cselect_b32 s34, s34, 1536
    v_add_u32 v{T0+5}, s33, v2
    v_mul_lo_u32 v{T0+5}, v{T0+5}, s34
    s_lshl_b32 s33, s30, 6
    v_lshlrev_b32 v{T0+7}, 4, v3
    v_add_u32 v{T0+7}, s33, v{T0+7}
    v_add_u32 v{T0+5}, v{T0+5}, v{T0+7}
    s_lshl_b32 s33, s34, 5
    v_add_u32 v{T0+7}, s33, v{T0+5}
    s_lshl_b32 s33, s34, 7
    s_mul_i32 s39, s33, s24
    s_add_u32 s39, s39, s27
    s_mov_b32 s33, {PQ}
    s_cmp_lt_u32 s25, 5
    s_cselect_b32 s33, s33, {Z1}
    s_add_u32 s39, s39, s33
    s_waitcnt lgkmcnt(0)
    s_barrier
    s_cmp_lt_u32 s25, 5
    s_cbranch_scc1 k2_phi
    """)
    A.reset_counters(); A.vmq = list(vq)
    k2_epilogue(A, 'gelu')
    n0 = A.st.n
    A.st.flush(8, 1)
    A.st.n = n0
    A('s_endpgm')
    A.label('k2_phi')
    A('s_nop 4')
    A.reset_counters(); A.vmq = list(vq)
    k2_epilogue(A, 'phi')
    A.st.flush(8, 1)
    A.st.n = 1
    A('s_endpgm')
    gen_k2_ln(A)
    gen_k2_kv(A)
    gen_k2_wt(A)
    A.label('k2_done')
    A('s_endpgm')

def lane_reduce8(A, regs, tmp):
    for r in regs:
        A(f'v_add_f32_dpp v{r}, v{r}, v{r} row_ror:8 row_mask:0xf bank_mask:0xf')
    for r in regs:
        A(f'v_mov_b32 v{tmp}, v{r}')
        A(f'v_permlane16_swap_b32 v{r}, v{tmp}')
        A(f'v_add_f32 v{r}, v{r}, v{tmp}')
    for r in regs:
        A(f'v_mov_b32 v{tmp}, v{r}')
        A(f'v_permlane32_swap_b32 v{r}, v{tmp}')
        A(f'v_add_f32 v{r}, v{r}, v{tmp}')

def gen_k2_ln(A):
    A.label('k2_ln')
    A.reset_counters()
    X = 16; U = 64; S = 160; M = 168; R = 176; TM = 184; RD = 192
    A('''
    s_waitcnt lgkmcnt(0)
    s_sub_u32 s24, s2, 176
    ''')
    srd(A, 20, 10, WS_END)
    A(f'''
    v_and_b32 v1, 63, v0
    v_lshrrev_b32 v2, 3, v1
    v_and_b32 v3, 7, v1
    s_mul_i32 s33, s28, 96
    v_add_u32 v2, s33, v2
    v_lshlrev_b32 v2, 12, v2
    v_lshlrev_b32 v4, 4, v3
    v_add_u32 v2, v2, v4
    s_lshl_b32 s33, s24, 7
    v_add_u32 v2, s33, v2
    ''')
    for it in range(12):
        A(f's_mov_b32 s34, {1280*4096 + 32768*it}')
        A.vm(('x', it), f'buffer_load_dwordx4 {vr(X+4*it)}, v2, s[20:23], s34 offen')
    for e in range(8):
        A(f'v_mov_b32 v{S+e}, 0')
    A(f'''
    v_lshrrev_b32 v7, 2, v3
    v_lshlrev_b32 v7, 10, v7
    v_lshrrev_b32 v8, 3, v1
    v_lshlrev_b32 v8, 4, v8
    v_add_u32 v7, v7, v8
    v_and_b32 v8, 3, v3
    v_lshlrev_b32 v8, 8, v8
    v_add_u32 v7, v7, v8
    s_mul_i32 s35, s28, {6*65536}
    s_lshl_b32 s33, s24, 11
    s_add_u32 s35, s35, s33
    s_add_u32 s35, s35, {Z2NT}
    ''')
    A(f'''
    v_lshlrev_b32 v5, 5, v3
    s_lshl_b32 s33, s28, 8
    v_add_u32 v6, s33, v5
    ''')
    for it in range(12):
        A.wait_vm(('x', it))
        for d in range(4):
            A(f'v_lshlrev_b32 v{U+8*it+2*d}, 16, v{X+4*it+d}')
            A(f'v_and_b32 v{U+8*it+2*d+1}, 0xffff0000, v{X+4*it+d}')
        for e in range(8):
            A(f'v_add_f32 v{S+e}, v{S+e}, v{U+8*it+e}')
    def xwave(base_off, dst):
        lane_reduce8(A, [S + e for e in range(8)], TM)
        A(f'ds_write_b128 v6, {vr(S)} offset:{base_off}')
        A(f'ds_write_b128 v6, {vr(S+4)} offset:{base_off+16}')
        A('s_waitcnt lgkmcnt(0)')
        A('s_barrier')
        for w in range(8):
            A(f'ds_read_b128 {vr(RD+8*w)}, v5 offset:{base_off+256*w}')
            A(f'ds_read_b128 {vr(RD+8*w+4)}, v5 offset:{base_off+256*w+16}')
        A('s_waitcnt lgkmcnt(0)')
        for e in range(8):
            A(f'v_add_f32 v{dst+e}, v{RD+e}, v{RD+8+e}')
        for w in range(2, 8):
            for e in range(8):
                A(f'v_add_f32 v{dst+e}, v{dst+e}, v{RD+8*w+e}')
        for e in range(8):
            A(f'v_mul_f32 v{dst+e}, {f32(1/768)}, v{dst+e}')
    xwave(0, M)
    for e in range(8):
        A(f'v_mov_b32 v{S+e}, 0')
    for it in range(12):
        for e in range(8):
            A(f'v_sub_f32 v{TM+e}, v{U+8*it+e}, v{M+e}')
        for e in range(8):
            A(f'v_fmac_f32 v{S+e}, v{TM+e}, v{TM+e}')
    xwave(4096, R)
    for e in range(8):
        rnd_pair(A, TM, M + e, R + e)
    for e in range(8):
        A(f'v_add_f32 v{R+e}, {f32(1e-5)}, v{R+e}')
    for e in range(0, 8, 2):
        rnd_pair(A, TM, R + e, R + e + 1)
    for e in range(8):
        A(f'v_sqrt_f32 v{R+e}, v{R+e}')
    for e in range(0, 8, 2):
        rnd_pair(A, TM, R + e, R + e + 1)
    for e in range(8):
        A(f'v_rcp_f32 v{R+e}, v{R+e}')
    for it in range(12):
        for e in range(8):
            A(f'v_sub_f32 v{U+8*it+e}, v{U+8*it+e}, v{M+e}')
        for e in range(0, 8, 2):
            rnd_pair(A, TM + e // 2, U + 8 * it + e, U + 8 * it + e + 1)
        for e in range(8):
            A(f'v_mul_f32 v{U+8*it+e}, v{U+8*it+e}, v{R+e}')
        for d in range(4):
            A(f'v_cvt_pk_bf16_f32 v{X+4*it+d}, v{U+8*it+2*d}, v{U+8*it+2*d+1}')
        A(f's_add_u32 s34, s35, {(it>>1)*65536}')
        A(f'buffer_store_dwordx4 {vr(X+4*it)}, v7, s[20:23], s34 offen offset:{(it&1)*128}')
    A.st.flush(8, 1)
    A.st.n = 1
    A('s_endpgm')

def wsp_prefetch(A, jexpr_code):
    if os.environ.get('NOPF') or not os.environ.get('AUXPF'):
        return
    A(f"""
    s_load_dwordx2 s[44:45], s[0:1], 40
    {jexpr_code}
    s_lshl_b32 s43, s43, 3
    s_add_u32 s43, s43, s28
    s_mul_i32 s43, s43, 43776
    s_and_b32 s42, s2, 7
    s_lshr_b32 s42, s42, 1
    s_lshl_b32 s42, s42, 21
    s_add_u32 s42, s42, s43
    v_and_b32 v5, 63, v0
    v_lshlrev_b32 v5, 7, v5
    s_mov_b32 s46, {2048*4096}
    s_mov_b32 s47, 0x00020000
    s_waitcnt lgkmcnt(0)
    s_and_b32 s45, s45, 0xffff
    """)
    for q in range(6):
        A.vm('pf', 'buffer_load_dword v8, v5, s[44:47], s42 offen')
        A('s_add_u32 s42, s42, 8192')

def gen_k2_kv(A):
    A.label('k2_kv')
    A.reset_counters()
    FR = 16; KVA = 144; ZA = 160; ON = 168; TM = 172
    A("""
    s_waitcnt lgkmcnt(0)
    s_sub_u32 s24, s2, 208
    """)
    wsp_prefetch(A, 's_lshr_b32 s43, s24, 3')
    srd(A, 20, 10, WS_END)
    A(f"""
    v_and_b32 v1, 63, v0
    v_and_b32 v2, 15, v1
    v_lshrrev_b32 v3, 4, v1
    s_mul_i32 s33, s24, 20
    s_lshr_b32 s25, s33, 4
    s_and_b32 s26, s33, 15
    s_lshl_b32 s33, s25, 16
    s_lshl_b32 s34, s28, 13
    s_add_u32 s33, s33, s34
    v_lshlrev_b32 v4, 4, v1
    v_add_u32 v4, s33, v4
    v_add_u32 v5, 0x10000, v4
    s_mov_b32 s34, {40*65536}
    s_mov_b32 s35, {40*65536+4096}
    s_movk_i32 s36, 4096
    """)
    for q in range(8):
        so_k = '0' if q < 4 else 's36'
        so_v = 's34' if q < 4 else 's35'
        o = 1024 * (q & 3)
        A.vm(('f', q), f'buffer_load_dwordx4 {vr(FR+16*q)}, v4, s[20:23], {so_k} offen offset:{o}')
        A.vm(('f', q), f'buffer_load_dwordx4 {vr(FR+16*q+4)}, v5, s[20:23], {so_k} offen offset:{o}')
        A.vm(('f', q), f'buffer_load_dwordx4 {vr(FR+16*q+8)}, v4, s[20:23], {so_v} offen offset:{o}')
        A.vm(('f', q), f'buffer_load_dwordx4 {vr(FR+16*q+12)}, v5, s[20:23], {so_v} offen offset:{o}')
    for i in range(24):
        A(f'v_mov_b32 v{KVA+i}, 0')
    for i in range(4):
        A(f'v_mov_b32 v{ON+i}, 0x3f803f80')
    for q in range(8):
        A.wait_vm(('f', q))
        for a_ in range(2):
            for b_ in range(2):
                d = KVA + 8 * a_ + 4 * b_
                A(f'v_mfma_f32_16x16x32_bf16 {vr(d)}, {vr(FR+16*q+4*a_)}, {vr(FR+16*q+8+4*b_)}, {vr(d)}')
            A(f'v_mfma_f32_16x16x32_bf16 {vr(ZA+4*a_)}, {vr(FR+16*q+4*a_)}, {vr(ON)}, {vr(ZA+4*a_)}')
    A(f"""
    s_lshl_b32 s33, s28, 12
    v_lshlrev_b32 v6, 7, v2
    v_lshl_add_u32 v6, v3, 4, v6
    v_add_u32 v6, s33, v6
    s_lshl_b32 s33, s28, 7
    v_lshlrev_b32 v7, 4, v3
    v_add_u32 v7, s33, v7
    """)
    for a_ in range(2):
        for b_ in range(2):
            A(f'ds_write_b128 v6, {vr(KVA+8*a_+4*b_)} offset:{2048*b_ + 64*a_}')
        A(f'ds_write_b128 v7, {vr(ZA+4*a_)} offset:{32768+64*a_}')
    A(f"""
    s_waitcnt lgkmcnt(0)
    s_barrier
    v_lshrrev_b32 v8, 4, v0
    v_add_u32 v8, s26, v8
    v_min_u32 v8, 31, v8
    v_and_b32 v9, 15, v0
    v_lshlrev_b32 v10, 1, v9
    v_add_u32 v10, s26, v10
    v_min_u32 v10, 30, v10
    v_lshlrev_b32 v10, 2, v10
    v_lshl_add_u32 v8, v8, 7, v10
    """)
    AF = 16; BF = 48
    for w in range(8):
        A(f'ds_read_b64 {vr(AF+2*w,2)}, v8 offset:{4096*w}')
        A(f'ds_read_b64 {vr(BF+2*w,2)}, v10 offset:{32768+128*w}')
    A('s_waitcnt lgkmcnt(0)')
    for base in (AF, BF):
        for w in range(1, 8):
            A(f'v_add_f32 v{base}, v{base}, v{base+2*w}')
            A(f'v_add_f32 v{base+1}, v{base+1}, v{base+2*w+1}')
    A(f"""
    v_cvt_pk_bf16_f32 v{TM}, v{AF}, v{AF+1}
    v_cvt_pk_bf16_f32 v{TM+1}, v{BF}, v{BF+1}
    v_cmp_gt_u32 vcc, 10, v9
    s_nop 1
    v_cndmask_b32 v{TM}, 0, v{TM}, vcc
    v_cndmask_b32 v{TM+1}, 0, v{TM+1}, vcc
    v_lshlrev_b32 v11, 2, v0
    s_lshl_b32 s33, s24, 11
    s_add_u32 s33, s33, {KVT}
    buffer_store_dword v{TM}, v11, s[20:23], s33 offen
    v_cmp_gt_u32 vcc, 16, v0
    v_mov_b32 v12, 0x7ffffff0
    s_nop 0
    v_cndmask_b32 v11, v12, v11, vcc
    s_lshl_b32 s33, s24, 6
    s_add_u32 s33, s33, {ZP}
    buffer_store_dword v{TM+1}, v11, s[20:23], s33 offen
    """)
    A.st.flush(8, 1)
    A.st.n = 1
    A('s_endpgm')

def gen_k2_wt(A):
    A.label('k2_wt')
    A.reset_counters()
    A('s_waitcnt lgkmcnt(0)')
    wsp_prefetch(A, 's_sub_u32 s43, s2, 208\n    s_lshr_b32 s43, s43, 3')
    A('''
    s_load_dwordx2 s[4:5], s[0:1], 16
    s_load_dwordx2 s[6:7], s[0:1], 56
    s_sub_u32 s24, s2, 240
    s_movk_i32 s26, 1280
    s_mov_b32 s27, 0
    v_and_b32 v1, 63, v0
    v_and_b32 v2, 31, v1
    v_lshrrev_b32 v3, 5, v1
    s_and_b32 s30, s28, 3
    s_lshr_b32 s29, s28, 2
    s_waitcnt lgkmcnt(0)
    ''')
    srd(A, 20, 10, WS_END)
    g1_dma_b_setup(A)
    A('''
    v_and_b32 v5, 15, v1
    v_lshrrev_b32 v5, 2, v5
    v_and_b32 v6, 3, v1
    v_lshlrev_b32 v7, 3, v3
    v_add_u32 v7, v7, v5
    v_lshlrev_b32 v7, 8, v7
    v_xor_b32 v8, s30, v5
    v_lshlrev_b32 v8, 6, v8
    v_add_u32 v7, v7, v8
    v_lshrrev_b32 v8, 4, v1
    v_and_b32 v8, 1, v8
    v_lshlrev_b32 v8, 5, v8
    v_add_u32 v7, v7, v8
    v_lshlrev_b32 v6, 3, v6
    v_add_u32 v7, v7, v6
    s_lshl_b32 s33, s29, 13
    v_add_u32 v7, s33, v7
    s_lshl_b32 s35, s28, 11
    s_lshl_b32 s33, s30, 1
    v_lshrrev_b32 v9, 4, v1
    v_and_b32 v9, 1, v9
    v_add_u32 v9, s33, v9
    s_mov_b32 s33, 45056
    v_mul_lo_u32 v9, v9, s33
    v_lshlrev_b32 v10, 8, v3
    v_add_u32 v9, v9, v10
    v_and_b32 v10, 15, v1
    v_lshlrev_b32 v10, 4, v10
    v_add_u32 v9, v9, v10
    s_lshl_b32 s33, s29, 10
    v_add_u32 v9, s33, v9
    s_mov_b32 s18, 983040
    s_mov_b32 s19, 0x00020000
    ''')
    def tile_scalars(q):
        A(f'''
        s_add_u32 s40, s24, {16*q}
        s_mul_i32 s41, s40, 52429
        s_lshr_b32 s41, s41, 18
        s_mul_i32 s42, s41, 5
        s_sub_u32 s42, s40, s42
        ''')
    for q in range(7):
        if q == 6:
            A('s_cmp_ge_u32 s24, 14')
            A('s_cbranch_scc1 k2_wt_issued')
        tile_scalars(q)
        A(f'''
        s_cmp_lt_u32 s41, 10
        s_cselect_b32 s16, s4, s6
        s_cselect_b32 s17, s5, s7
        s_cselect_b32 s43, 0, 10
        s_and_b32 s17, s17, 0xffff
        s_sub_u32 s43, s41, s43
        s_mul_i32 s43, s43, {64*1280}
        s_lshl_b32 s44, s42, 8
        s_add_u32 s43, s43, s44
        s_add_u32 m0, s35, {16384*q}
        s_nop 0
        buffer_load_dwordx4 v{VOB}, s[16:19], s43 offen lds
        buffer_load_dwordx4 v{VOB+1}, s[16:19], s43 offen offset:1024 lds
        ''')
    A.label('k2_wt_issued')
    A('''
    s_waitcnt vmcnt(0)
    s_barrier
    ''')
    for q in range(7):
        if q == 6:
            A('s_cmp_ge_u32 s24, 14')
            A('s_cbranch_scc1 k2_wt_done')
        tile_scalars(q)
        base = 16 + 8 * q
        A(f'v_add_u32 v11, {16384*q}, v7')
        for kk in range(2):
            A(f'ds_read_b64_tr_b16 {vr(base+4*kk,2)}, v11 offset:{kk*4096}')
            A(f'ds_read_b64_tr_b16 {vr(base+4*kk+2,2)}, v11 offset:{kk*4096+1024}')
        A(f'''
        s_mul_i32 s43, s42, {8*45056}
        s_lshl_b32 s44, s41, 11
        s_add_u32 s43, s43, s44
        s_add_u32 s43, s43, {WT}
        s_waitcnt lgkmcnt(0)
        buffer_store_dwordx4 {vr(base)}, v9, s[20:23], s43 offen
        buffer_store_dwordx4 {vr(base+4)}, v9, s[20:23], s43 offen offset:512
        ''')
    A.label('k2_wt_done')
    A.st.flush(8, 1)
    A.st.n = 1
    A('s_endpgm')

K3_STAGE = 16384
K3_NST = 6
K3_LDS = 98304

def xcd_decode_8x4(A):
    A("""
    s_and_b32 s33, s2, 7
    s_lshr_b32 s26, s2, 3
    s_lshr_b32 s24, s33, 1
    s_lshl_b32 s24, s24, 3
    s_lshr_b32 s25, s26, 2
    s_add_u32 s24, s24, s25
    s_and_b32 s25, s33, 1
    s_lshl_b32 s25, s25, 2
    s_and_b32 s34, s26, 3
    s_add_u32 s25, s25, s34
    """)

def dma_voffs(A, dst, n, rows_per_wave, stride, base_row_sreg, extra):
    for i in range(n):
        A(f"""
        s_mul_i32 s33, s28, {rows_per_wave}
        s_add_u32 s33, s33, {4*i}
        v_add_u32 v4, s33, v3
        v_and_b32 v5, 15, v4
        v_xor_b32 v5, v5, v2
        v_lshlrev_b32 v5, 4, v5
        v_add_u32 v4, s{base_row_sreg}, v4
        s_movk_i32 s34, {stride}
        v_mul_lo_u32 v4, v4, s34
        v_add_u32 v4, v4, v5
        v_add_u32 v{dst+i}, {extra - 1024*(i & 3)}, v4
        """)

def rr(kb, off, n=4):
    k, b = kb
    return f'{k}[{b+off}:{b+off+n-1}]'

def gen_k3(A):
    A.label('k3_kernel')
    A.st()
    A.reset_counters()
    A("""
    s_cmp_ge_u32 s2, 256
    s_cbranch_scc1 k3_done
    s_load_dwordx4 s[4:7], s[0:1], 40
    s_load_dwordx2 s[10:11], s[0:1], 80
    v_lshrrev_b32 v2, 6, v0
    v_and_b32 v1, 63, v0
    v_readfirstlane_b32 s28, v2
    v_and_b32 v2, 15, v1
    v_lshrrev_b32 v3, 4, v1
    """)
    xcd_decode_8x4(A)
    A('s_waitcnt lgkmcnt(0)')
    srd(A, 12, 4, 2048 * 4096)
    srd(A, 16, 6, 4096)
    srd(A, 20, 10, WS_END)
    NST = K3_NST; NR = 6
    VDA, VZ, VRD = 232, 236, 242
    ZR = lambda r: 88 + 24 * r
    AFR = lambda b: ('a', 96 + 16 * b)
    A('s_lshl_b32 s40, s24, 6')
    dma_voffs(A, VDA, 4, 16, 4096, 40, 0)
    A(f"""
    s_mul_i32 s33, s25, {6*65536}
    s_lshl_b32 s34, s28, 10
    s_add_u32 s33, s33, s34
    s_add_u32 s33, s33, {Z2NT}
    v_lshlrev_b32 v4, 4, v1
    v_add_u32 v{VZ}, s33, v4
    """)
    for j in range(1, 6):
        A(f'v_add_u32 v{VZ+j}, {65536*j}, v{VZ}')
    A(f"""
    s_lshl_b32 s33, s28, 2
    v_add_u32 v4, s33, v3
    v_xor_b32 v4, v4, v2
    v_lshlrev_b32 v4, 4, v4
    v_lshlrev_b32 v5, 8, v2
    v_add_u32 v{VRD}, v4, v5
    v_add_u32 v{VRD+1}, {3*K3_STAGE}, v{VRD}
    s_lshl_b32 s42, s28, 12
    s_and_b32 s33, s2, 7
    s_lshl_b32 s49, s33, 1
    """)
    rm = os.environ.get('K3ROT', 'wg')
    if rm == 'wg':
        A('s_add_u32 s49, s49, s26')
    def dma(c):
        st = c % NST
        A(f's_add_u32 s44, s49, {c}')
        A(f's_and_b32 s44, s44, 15')
        A(f's_lshl_b32 s44, s44, 8')
        A(f's_add_u32 m0, s42, {st*K3_STAGE}')
        for i in range(4):
            A.vm(('d', c), f'buffer_load_dwordx4 v{VDA+i}, s[12:15], s44 offen offset:{1024*i} lds')
    def zloads(c):
        A(f's_add_u32 s45, s49, {c}')
        A(f's_and_b32 s45, s45, 15')
        A(f's_lshl_b32 s45, s45, 12')
        for j in range(6):
            A.vm(('z', c), f'buffer_load_dwordx4 {vr(ZR(c % NR)+4*j)}, v{VZ+j}, s[20:23], s45 offen')
    def read_list(c):
        st = c % NST; fb = AFR(c & 1)
        return [f'ds_read_b128 {rr(fb, 4*i)}, v{VRD + st//3} offset:{(st%3)*K3_STAGE + 4096*i}' for i in range(4)]
    for c in range(2):
        dma(c)
        zloads(c)
    if os.environ.get('K3TOUCH'):
        A(f"""
        s_cmp_lt_u32 s28, 2
        s_cbranch_scc0 k3_tb
        s_and_b32 s33, s26, 3
        s_lshl_b32 s33, s33, 4
        s_add_u32 s33, s33, s40
        v_add_u32 v8, s33, v2
        v_lshlrev_b32 v8, 12, v8
        v_lshlrev_b32 v9, 7, v3
        v_add_u32 v8, v8, v9
        s_lshl_b32 s33, s28, 11
        buffer_load_dword v10, v8, s[12:15], s33 offen
        buffer_load_dword v10, v8, s[12:15], s33 offen offset:512
        buffer_load_dword v10, v8, s[12:15], s33 offen offset:1024
        buffer_load_dword v10, v8, s[12:15], s33 offen offset:1536
        s_branch k3_td
        """)
        A.label('k3_tb')
        A(f"""
        s_lshr_b32 s33, s26, 2
        s_mul_i32 s33, s33, 49152
        s_mul_i32 s34, s25, {6*65536}
        s_add_u32 s33, s33, s34
        s_mul_i32 s34, s28, 24576
        s_add_u32 s33, s33, s34
        s_add_u32 s33, s33, {Z2NT - 49152}
        v_lshlrev_b32 v8, 7, v1
        s_add_u32 s34, s33, 8192
        buffer_load_dword v10, v8, s[20:23], s33 offen
        buffer_load_dword v10, v8, s[20:23], s34 offen
        s_add_u32 s34, s33, 16384
        buffer_load_dword v10, v8, s[20:23], s34 offen
        buffer_load_dword v10, v8, s[20:23], s34 offen
        """)
        A.label('k3_td')
        A.vmq += ['t'] * 4
    A(f"""
    s_lshr_b32 s33, s2, 1
    s_lshl_b32 s33, s33, 4
    v_add_u32 v4, s33, v2
    s_movk_i32 s34, 1280
    v_mul_lo_u32 v5, v4, s34
    v_lshlrev_b32 v6, 4, v3
    v_add_u32 v5, v5, v6
    s_and_b32 s35, s2, 1
    s_lshl_b32 s35, s35, 4
    s_lshl_b32 s34, s28, 2
    s_add_u32 s35, s35, s34
    s_mul_i32 s36, s35, 40
    s_add_u32 s37, s36, {PQ}
    v_lshlrev_b32 v7, 6, v2
    v_add_u32 v7, v7, v6
    s_lshl_b32 s38, s35, 11
    s_add_u32 s38, s38, {KVT}
    s_add_u32 s46, s38, 4096
    s_lshl_b32 s39, s35, 6
    s_add_u32 s39, s39, {ZP}
    """)
    OF = 16
    def o_loads():
        for q in range(4):
            b = OF + 16 * q
            sk = 38 if q < 2 else 46
            A.vm('o', f'buffer_load_dwordx4 {vr(b)}, v5, s[20:23], s37 offen offset:{40*q}')
            A.vm('o', f'buffer_load_dwordx4 {vr(b+4)}, v7, s[20:23], s{sk} offen offset:{2048*(q&1)}')
            A.vm('o', f'buffer_load_dwordx4 {vr(b+8)}, v7, s[20:23], s{sk} offen offset:{2048*(q&1)+1024}')
            A.vm('o', f'buffer_load_dwordx4 {vr(b+12)}, v6, s[20:23], s39 offen offset:{64*q}')
    OD = 128
    def o_mfma():
        A.wait_vm('o')
        for q in range(4):
            b = OF + 16 * q; d = OD + 12 * q
            A(f'v_mfma_f32_16x16x32_bf16 a[{d}:{d+3}], {vr(b+4)}, {vr(b)}, 0')
            A(f'v_mfma_f32_16x16x32_bf16 a[{d+4}:{d+7}], {vr(b+8)}, {vr(b)}, 0')
            A(f'v_mfma_f32_16x16x32_bf16 a[{d+8}:{d+11}], {vr(b+12)}, {vr(b)}, 0')
    A(f"""
    s_lshr_b32 s33, s2, 1
    s_mul_i32 s36, s33, 45056
    s_add_u32 s36, s36, {OH}
    s_mul_i32 s33, s35, 20
    v_lshlrev_b32 v8, 2, v3
    v_add_u32 v8, s33, v8
    v_lshlrev_b32 v9, 4, v2
    v_cmp_eq_u32 s[50:51], 0, v3
    v_mov_b32 v80, 0x7ffffff0
    """)
    def coloff(dst, col):
        A(f"""
        v_lshrrev_b32 v10, 5, v{col}
        v_lshlrev_b32 v10, 10, v10
        v_bfe_u32 v11, v{col}, 3, 2
        v_lshl_add_u32 v10, v11, 8, v10
        v_bfe_u32 v11, v{col}, 2, 1
        v_lshl_add_u32 v10, v11, 3, v10
        v_add_u32 v{dst}, v10, v9
        """)
    def o_epi(q):
        D = 32; t = 16 + 4 * q
        for k in range(9):
            A(f'v_accvgpr_read_b32 v{D+k}, a{OD+12*q+k}')
        A(f'v_add_u32 v12, {20*q}, v8')
        coloff(81, 12)
        A(f'v_add_u32 v12, 16, v12')
        coloff(82, 12)
        A(f'v_cndmask_b32 v82, v80, v82, s[50:51]')
        A(f'v_cvt_pk_bf16_f32 v{t}, v{D+8}, v{D+8}')
        A(f'v_lshlrev_b32 v{D+8}, 16, v{t}')
        A(f'v_add_f32 v{D+8}, {f32(1e-6)}, v{D+8}')
        A(f'v_cvt_pk_bf16_f32 v{t}, v{D+8}, v{D+8}')
        A(f'v_lshlrev_b32 v{D+8}, 16, v{t}')
        A(f'v_rcp_f32 v{D+8}, v{D+8}')
        for k in range(0, 8, 2):
            rnd_pair(A, t, D + k, D + k + 1)
        for k in range(8):
            A(f'v_mul_f32 v{D+k}, v{D+k}, v{D+8}')
        for k in range(4):
            A(f'v_cvt_pk_bf16_f32 v{t+k}, v{D+2*k}, v{D+2*k+1}')
        A.vm('os', f'buffer_store_dwordx2 {vr(t,2)}, v81, s[20:23], s36 offen')
        A.vm('os', f'buffer_store_dwordx2 {vr(t+2,2)}, v82, s[20:23], s36 offen')
    Z1R = 64; BS = 76
    A(f"""
    s_lshl_b32 s34, s28, 4
    s_add_u32 s33, s40, s34
    v_add_u32 v13, s33, v2
    s_movk_i32 s34, 1536
    v_mul_lo_u32 v14, v13, s34
    v_lshlrev_b32 v11, 3, v3
    v_add_u32 v14, v14, v11
    s_mul_i32 s52, s25, 192
    s_add_u32 s47, s52, {Z1}
    v_lshlrev_b32 v13, 1, v13
    v_lshrrev_b32 v10, 1, v3
    v_lshlrev_b32 v10, 8, v10
    v_and_b32 v11, 1, v3
    v_lshl_add_u32 v10, v11, 3, v10
    v_add_u32 v15, v10, v9
    s_lshl_b32 s33, s24, 2
    s_add_u32 s33, s33, s28
    s_mul_i32 s33, s33, 44
    s_mul_i32 s34, s25, 3
    s_add_u32 s33, s33, s34
    s_add_u32 s33, s33, 20
    s_lshl_b32 s48, s33, 10
    s_add_u32 s48, s48, {OH}
    """)
    NC = 16
    A.st()
    A.st()
    A.wait_vm(('d', 0))
    A('s_barrier')
    A.st()
    for r in read_list(0):
        A.ld('fr', r)
    nxt = 2
    for c in range(NC):
        fa = AFR(c & 1); zb = ZR(c % NR)
        A.wait_ld_all()
        RL = []
        if c < NC - 1:
            A.wait_vm(('d', c + 1))
            A('s_barrier')
            RL = read_list(c + 1)
        A.wait_vm(('z', c))
        if c in (3, 7, 11):
            A.st()
        todo = []
        while nxt < NC and nxt <= c + NR - 1 and len(todo) < 2:
            todo.append(nxt); nxt += 1
        n = 0
        for i in range(4):
            for j in range(6):
                acc = (j * 4 + i) * 4
                cin = '0' if c == 0 else f'a[{acc}:{acc+3}]'
                A(f'v_mfma_f32_16x16x32_bf16 a[{acc}:{acc+3}], {vr(zb+4*j)}, {rr(fa,4*i)}, {cin}')
                n += 1
                if n % 2 == 0 and RL:
                    A.ld('fr', RL.pop(0))
                for ti, cc in enumerate(todo):
                    if n == 1 + 12 * ti:
                        dma(cc)
                    if n == 6 + 12 * ti:
                        zloads(cc)
        assert not RL
        if c == 10:
            o_loads()
        if c == 12:
            o_mfma()
        if c == 13:
            o_epi(0); o_epi(1)
        if c == 14:
            o_epi(2); o_epi(3)
            for j in range(6):
                A.vm('z1', f'buffer_load_dwordx2 {vr(Z1R+2*j,2)}, v14, s[20:23], s47 offen offset:{32*j}')
            A.vm('z1', f'buffer_load_ushort v{BS}, v13, s[16:19], 0 offen')
    A.st()
    A(f"""
    v_lshlrev_b32 v4, 4, v1
    s_mul_i32 s33, s28, 24576
    v_add_u32 v5, s33, v4
    s_lshl_b32 s33, s28, 10
    v_add_u32 v6, s33, v4
    v_add_u32 v7, 49152, v6
    s_barrier
    """)
    for tl in range(24):
        A(f'ds_write_b128 v5, a[{4*tl}:{4*tl+3}] offset:{1024*tl}')
    A('s_waitcnt lgkmcnt(0)')
    A('s_barrier')
    RB = 128
    for src in range(4):
        for j in range(6):
            A(f'ds_read_b128 {vr(RB+24*src+4*j)}, v{6 if src < 2 else 7} offset:{(src&1)*24576 + 4096*j}')
    A('s_waitcnt lgkmcnt(0)')
    for src in range(1, 4):
        for k in range(24):
            A(f'v_add_f32 v{RB+k}, v{RB+k}, v{RB+24*src+k}')
    A.wait_vm('z1')
    A(f'v_lshlrev_b32 v{BS}, 16, v{BS}')
    TP = 16
    for k in range(0, 24, 2):
        rnd_pair(A, TP + k // 2, RB + k, RB + k + 1)
    for k in range(24):
        A(f'v_add_f32 v{RB+k}, v{RB+k}, v{BS}')
    for k in range(0, 24, 2):
        rnd_pair(A, TP + k // 2, RB + k, RB + k + 1)
    for k in range(12):
        A(f'v_lshlrev_b32 v{TP+2*k}, 16, v{Z1R+k}')
        A(f'v_and_b32 v{TP+2*k+1}, 0xffff0000, v{Z1R+k}')
    for k in range(24):
        A(f'v_mul_f32 v{RB+k}, v{RB+k}, v{TP+k}')
    for k in range(12):
        A(f'v_cvt_pk_bf16_f32 v{Z1R+k}, v{RB+2*k}, v{RB+2*k+1}')
    for j in range(6):
        A(f'buffer_store_dwordx2 {vr(Z1R+2*j,2)}, v15, s[20:23], s48 offen offset:{(j>>1)*1024 + (j&1)*512}')
    A.st.flush(4, 2)
    A.label('k3_done')
    A('s_endpgm')

K4_LDS = 163840
def k4_stage(s):
    return ('a', 160 + 36 * s) if s < 2 else ('v', 100 + 36 * (s - 2))

def gen_k4(A):
    A.label('k4_kernel')
    A.st()
    A.reset_counters()
    A("""
    s_cmp_ge_u32 s2, 256
    s_cbranch_scc1 k4_done
    s_load_dwordx2 s[4:5], s[0:1], 0
    s_load_dwordx2 s[6:7], s[0:1], 64
    s_load_dwordx2 s[10:11], s[0:1], 80
    v_lshrrev_b32 v2, 6, v0
    v_and_b32 v1, 63, v0
    v_readfirstlane_b32 s28, v2
    v_and_b32 v2, 15, v1
    v_lshrrev_b32 v3, 4, v1
    """)
    xcd_decode_8x4(A)
    A('s_waitcnt lgkmcnt(0)')
    srd(A, 12, 4, 2048 * 1280)
    srd(A, 16, 6, 2048 * 1280)
    srd(A, 20, 10, WS_END)
    VW, VO = 64, 69
    A(f"""
    v_lshlrev_b32 v4, 4, v1
    s_lshl_b32 s34, s28, 10
    s_mul_i32 s33, s25, {5*45056}
    s_add_u32 s33, s33, s34
    s_add_u32 s33, s33, {WT}
    v_add_u32 v{VW}, s33, v4
    s_mul_i32 s33, s24, {4*45056}
    s_add_u32 s33, s33, s34
    s_add_u32 s33, s33, {OH}
    v_add_u32 v{VO}, s33, v4
    """)
    for j in range(1, 5):
        A(f'v_add_u32 v{VW+j}, {45056*j}, v{VW}')
    for i in range(1, 4):
        A(f'v_add_u32 v{VO+i}, {45056*i}, v{VO}')
    NS = 6
    def loads(step):
        sb = k4_stage(step % NS)
        A(f's_mov_b32 s44, {4096*step}')
        for j in range(5):
            A.vm(('m', step), f'buffer_load_dwordx4 {rr(sb, 4*j)}, v{VW+j}, s[20:23], s44 offen')
        for i in range(4):
            A.vm(('m', step), f'buffer_load_dwordx4 {rr(sb, 20+4*i)}, v{VO+i}, s[20:23], s44 offen')
    A.st()
    if os.environ.get('K4TOUCH'):
        A(f"""
        v_lshlrev_b32 v8, 7, v1
        s_cmp_lt_u32 s28, 2
        s_cbranch_scc0 k4_tb
        s_and_b32 s33, s26, 3
        s_mul_i32 s33, s33, 45056
        s_mul_i32 s34, s24, {4*45056}
        s_add_u32 s33, s33, s34
        s_mul_i32 s34, s28, 24576
        s_add_u32 s33, s33, s34
        s_add_u32 s33, s33, {OH}
        s_branch k4_tg
        """)
        A.label('k4_tb')
        A(f"""
        s_lshr_b32 s33, s26, 2
        s_mul_i32 s33, s33, 28160
        s_mul_i32 s34, s25, {5*45056}
        s_add_u32 s33, s33, s34
        s_mul_i32 s34, s28, 16384
        s_add_u32 s33, s33, s34
        s_add_u32 s33, s33, {WT - 32768}
        """)
        A.label('k4_tg')
        A(f"""
        s_add_u32 s34, s33, 8192
        s_add_u32 s35, s33, 16384
        """)
        A.vm('t', 'buffer_load_dword v10, v8, s[20:23], s33 offen')
        A.vm('t', 'buffer_load_dword v10, v8, s[20:23], s34 offen')
        A.vm('t', 'buffer_load_dword v10, v8, s[20:23], s35 offen')
    for s_ in range(2):
        loads(s_)
    XR = 244
    A(f"""
    s_lshl_b32 s33, s24, 6
    s_lshl_b32 s34, s28, 4
    s_add_u32 s33, s33, s34
    v_add_u32 v13, s33, v2
    s_movk_i32 s34, 1280
    v_mul_lo_u32 v14, v13, s34
    v_lshlrev_b32 v12, 3, v3
    v_add_u32 v14, v14, v12
    s_mul_i32 s46, s25, 160
    """)
    nxt = 2
    for step in range(11):
        sb = k4_stage(step % NS)
        ph = 0 if step < 5 else 1
        A.wait_vm(('m', step))
        if step in (0, 3, 6, 9):
            A.st()
        todo = []
        while nxt < 11 and nxt <= step + NS - 1 and len(todo) < 2:
            todo.append(nxt); nxt += 1
        n = 0
        for i in range(4):
            for j in range(5):
                acc = ph * 80 + (j * 4 + i) * 4
                cin = '0' if step in (0, 5) else f'a[{acc}:{acc+3}]'
                A(f'v_mfma_f32_16x16x32_bf16 a[{acc}:{acc+3}], {rr(sb,4*j)}, {rr(sb,20+4*i)}, {cin}')
                n += 1
                for ti, cc in enumerate(todo):
                    if n == 1 + 10 * ti:
                        loads(cc)
                if step in (6, 7) and n % 2 == 0:
                    tl = (step - 6) * 10 + n // 2 - 1
                    A(f'ds_write_b128 v5, a[{4*tl}:{4*tl+3}] offset:{1024*tl}')
        if step == 5:
            A(f"""
            v_lshlrev_b32 v4, 4, v1
            s_mul_i32 s33, s28, 20480
            v_add_u32 v5, s33, v4
            v_add_u32 v6, 81920, v5
            s_lshl_b32 s33, s28, 10
            v_add_u32 v7, s33, v4
            """)
            for src in range(4):
                A(f'v_add_u32 v{8+src}, {src*20480}, v7')
        if step == 8:
            A('s_waitcnt lgkmcnt(0)')
            A('s_barrier')
            for src in range(4):
                for j in range(5):
                    A(f'ds_read_b128 {vr(20+20*src+4*j)}, v{8+src} offset:{4096*j}')
        if step == 9:
            A('s_waitcnt lgkmcnt(0)')
            for src in range(1, 4):
                for k in range(20):
                    A(f'v_add_f32 v{20+k}, v{20+k}, v{20+20*src+k}')
        if step == 7:
            for j in range(5):
                A.vm('x', f'buffer_load_dwordx2 {vr(XR+2*j,2)}, v14, s[12:15], s46 offen offset:{32*j}')
    A.st()
    for tl in range(20):
        A(f'ds_write_b128 v6, a[{80+4*tl}:{80+4*tl+3}] offset:{1024*tl}')
    for src in range(4):
        A(f'v_add_u32 v{8+src}, {81920 + src*20480}, v7')
    A('s_waitcnt lgkmcnt(0)')
    A('s_barrier')
    RA = 20; RBB = 100
    for src in range(4):
        for j in range(5):
            A(f'ds_read_b128 {vr(RBB+20*src+4*j)}, v{8+src} offset:{4096*j}')
    TP = 40
    A.wait_vm('x')
    for k in range(0, 20, 2):
        rnd_pair(A, TP + k // 2, RA + k, RA + k + 1)
    for k in range(10):
        A(f'v_lshlrev_b32 v{TP+2*k}, 16, v{XR+k}')
        A(f'v_and_b32 v{TP+2*k+1}, 0xffff0000, v{XR+k}')
    for k in range(20):
        A(f'v_add_f32 v{RA+k}, v{TP+k}, v{RA+k}')
    for k in range(0, 20, 2):
        rnd_pair(A, TP + k // 2, RA + k, RA + k + 1)
    A('s_waitcnt lgkmcnt(0)')
    for src in range(1, 4):
        for k in range(20):
            A(f'v_add_f32 v{RBB+k}, v{RBB+k}, v{RBB+20*src+k}')
    A.st()
    for k in range(0, 20, 2):
        rnd_pair(A, TP + k // 2, RBB + k, RBB + k + 1)
    for k in range(20):
        A(f'v_add_f32 v{RA+k}, v{RA+k}, v{RBB+k}')
    for k in range(10):
        A(f'v_cvt_pk_bf16_f32 v{XR+k}, v{RA+2*k}, v{RA+2*k+1}')
    for j in range(5):
        A(f'buffer_store_dwordx2 {vr(XR+2*j,2)}, v14, s[16:19], s46 offen offset:{32*j}')
    A.st.flush(4, 3)
    A.label('k4_done')
    A('s_endpgm')

def kd(name, vgpr, accum, sgpr=100):
    return f'''
.amdhsa_kernel {name}
  .amdhsa_next_free_vgpr {vgpr}
  .amdhsa_next_free_sgpr {sgpr}
  .amdhsa_accum_offset {accum}
  .amdhsa_group_segment_fixed_size 0
  .amdhsa_kernarg_size 88
  .amdhsa_user_sgpr_count 2
  .amdhsa_user_sgpr_kernarg_segment_ptr 1
  .amdhsa_system_sgpr_workgroup_id_x 1
.end_amdhsa_kernel
'''

def main():
    hdr = open(f'cdna_kernels/{NAME}.s.ref').read().split('\n')
    hdr = [l for l in hdr if l.startswith(';') and '@launch' not in l]
    out = '\n'.join(hdr) + '\n'
    out += f'; @launch kernel=k1_kernel grid=(256,1,1) block=(512,1,1) lds={G1_LDS}\n'
    out += f'; @launch kernel=k2_kernel grid=(256,1,1) block=(512,1,1) lds={G1_LDS}\n'
    out += f'; @launch kernel=k3_kernel grid=(256,1,1) block=(256,1,1) lds={K3_LDS}\n'
    out += f'; @launch kernel=k4_kernel grid=(256,1,1) block=(256,1,1) lds={K4_LDS}\n'
    out += '.amdgcn_target "amdgcn-amd-amdhsa--gfx950"\n.text\n'
    for nm, fn in (('k1_kernel', gen_k1), ('k2_kernel', gen_k2), ('k3_kernel', gen_k3), ('k4_kernel', gen_k4)):
        A = Asm()
        A.st = Stamps(A, nm[:2] in STAMP)
        A.flags = {'ldf': os.environ.get('LDF', ''), 'ldi': os.environ.get('LDI', ''), 'st': os.environ.get('STF', '')}
        fn(A)
        out += f'.globl {nm}\n.p2align 8\n.type {nm},@function\n'
        out += A.render()
    out += '.section .rodata,"a"\n.p2align 6\n'
    out += kd('k1_kernel', 256, 256)
    out += kd('k2_kernel', 256, 256)
    out += kd('k3_kernel', 512, 256)
    out += kd('k4_kernel', 512, 256)
    open(os.environ.get('OUT', f'cdna_kernels/{NAME}.s'), 'w').write(out)

if __name__ == '__main__':
    main()
```

```python
import re

TRANS = ('v_exp_f32', 'v_rcp_f32', 'v_sqrt_f32', 'v_rsq_f32', 'v_log_f32', 'v_sin_f32', 'v_cos_f32')

def _split_ops(s):
    out, depth, cur = [], 0, ''
    for ch in s:
        if ch in '[(':
            depth += 1
        elif ch in '])':
            depth -= 1
        if ch == ',' and depth == 0:
            out.append(cur.strip()); cur = ''
        else:
            cur += ch
    if cur.strip():
        out.append(cur.strip())
    return out

_REG = re.compile(r'^(?:-|\|)?(?:abs\()?([vas])(\d+|\[(\d+):(\d+)\])\)?\|?$')

def regs_of(op):
    op = op.strip()
    tok = op.split()[0] if op else ''
    if tok in ('vcc', 'exec', 'm0', 'scc'):
        return {tok}
    if tok in ('vcc_lo', 'vcc_hi'):
        return {'vcc'}
    m = _REG.match(tok)
    if not m:
        return set()
    k = m.group(1)
    if m.group(3) is not None:
        return {f'{k}{i}' for i in range(int(m.group(3)), int(m.group(4)) + 1)}
    return {f'{k}{m.group(2)}'}

class Ins:
    __slots__ = ('text', 'mn', 'kind', 'w', 'r', 'cond', 'states', 'srcc', 'passes', 'dpp', 'wide')

def parse(text, cond):
    I = Ins(); I.text = text; I.cond = cond; I.states = 1; I.srcc = set(); I.passes = 0; I.dpp = False; I.wide = False
    t = text.split(';')[0].strip()
    parts = t.split(None, 1)
    mn = parts[0]; I.mn = mn
    ops = _split_ops(parts[1]) if len(parts) > 1 else []
    R = lambda idxs: set().union(*[regs_of(ops[i]) for i in idxs if i < len(ops)]) if idxs else set()
    n = len(ops)
    I.w, I.r = set(), set()
    if mn.endswith(':'):
        I.kind = 'label'; I.states = 0
    elif mn == 's_nop':
        I.kind = 'nop'; I.states = int(ops[0], 0) + 1
    elif mn.startswith('v_mfma'):
        I.kind = 'mfma'; I.w = R([0]); I.r = R([1, 2, 3]); I.srcc = R([3])
        I.passes = 8 if '32x32x16' in mn else (2 if '4x4x4' in mn else 4)
    elif mn.startswith('v_'):
        I.kind = 'trans' if mn.split('_e32')[0] in TRANS else 'valu'
        I.dpp = ('dpp' in mn) or any(x in t for x in ('quad_perm', 'row_shr', 'row_ror', 'row_mirror', 'row_half_mirror', 'row_bcast', 'row_newbcast', 'row_shl'))
        if mn.startswith('v_permlane'):
            I.w = R([0, 1]); I.r = R([0, 1])
        elif mn.startswith('v_add_co') or mn.startswith('v_sub_co') or mn.startswith('v_addc_co') or mn.startswith('v_mad_u64'):
            I.w = R([0, 1]); I.r = R(range(2, n))
        elif mn.startswith('v_cmp'):
            I.w = R([0]); I.r = R(range(1, n))
        elif mn.startswith('v_fmac') or mn.startswith('v_dot2c') or mn.startswith('v_pk_fmac'):
            I.w = R([0]); I.r = R(range(0, n))
        else:
            I.w = R([0]); I.r = R(range(1, n))
        if mn.startswith('v_cndmask') and n == 3:
            I.r |= {'vcc'}
    elif mn.startswith('ds_'):
        I.kind = 'ds'
        if mn.startswith('ds_read') or mn.startswith('ds_bpermute') or mn.startswith('ds_permute') or mn.startswith('ds_swizzle'):
            I.w = R([0]); I.r = R(range(1, n))
        else:
            I.r = R(range(0, n))
    elif mn.startswith('buffer_') or mn.startswith('global_'):
        I.kind = 'vmem'
        if 'load' in mn:
            if re.search(r'\blds\b', t):
                I.r = R(range(0, n)) | {'m0'}; I.kind = 'vmem_lds'
            else:
                I.w = R([0]); I.r = R(range(1, n))
        else:
            I.r = R(range(0, n))
            I.wide = ('x4' in mn or 'x3' in mn)
    elif mn.startswith('s_'):
        I.kind = 'salu'
        if mn.startswith('s_cmp') or mn in ('s_waitcnt', 's_barrier', 's_endpgm', 's_setprio', 's_sleep') or mn.startswith('s_branch') or mn.startswith('s_cbranch'):
            I.r = R(range(0, n))
        elif mn.startswith('s_load'):
            I.kind = 'smem'; I.w = R([0]); I.r = R(range(1, n))
        else:
            I.w = R([0]); I.r = R(range(1, n))
            if 'saveexec' in mn:
                I.w |= {'exec'}
    else:
        I.kind = 'other'
    return I

class Asm:
    def __init__(self):
        self.items = []
        self.cond = False
        self.vmq = []
        self.ldq = []
    def raw(self, s):
        self.items.append(s)
    def __call__(self, text):
        for line in text.strip().split('\n'):
            line = line.strip()
            if not line or line.startswith(';'):
                continue
            if line.startswith('buffer_') and getattr(self, 'flags', None):
                ws = 's[20:23]' in line
                if 's[60:63]' in line:
                    f = ''
                elif line.startswith('buffer_load'):
                    f = self.flags['ldi'] if ws else self.flags['ldf']
                else:
                    f = self.flags['st']
                if f:
                    if line.endswith(' lds'):
                        line = line[:-4] + ' ' + f + ' lds'
                    else:
                        line = line + ' ' + f
            self.items.append(parse(line, self.cond))
    def label(self, name):
        self.items.append(parse(name + ':', self.cond))
    def vm(self, tag, text):
        self(text); self.vmq.append(tag)
    def ld(self, tag, text):
        self(text); self.ldq.append(tag)
    def _cnt(self, q, tag):
        idx = [i for i, t in enumerate(q) if t == tag]
        if not idx:
            return None
        return len(q) - 1 - idx[-1]
    def wait_vm(self, tag):
        n = self._cnt(self.vmq, tag)
        if n is None:
            return
        assert n <= 63, n
        self(f's_waitcnt vmcnt({n})')
        self.vmq = self.vmq[len(self.vmq) - n:] if n else []
    def wait_ld(self, tag):
        n = self._cnt(self.ldq, tag)
        if n is None:
            return
        n = min(n, 15)
        self(f's_waitcnt lgkmcnt({n})')
        self.ldq = self.ldq[len(self.ldq) - n:] if n else []
    def wait_ld_all(self):
        self('s_waitcnt lgkmcnt(0)'); self.ldq = []
    def wait_vm_all(self):
        self('s_waitcnt vmcnt(0)'); self.vmq = []
    def reset_counters(self):
        self.vmq = []; self.ldq = []
    def render(self):
        out = []
        hist = []
        pf = 0; pu = 0
        def need(I):
            req = 0
            for (P, f, u) in reversed(hist):
                d = (pf - f) if I.cond else (pu - u)
                if pf - f > 24:
                    break
                k = 0
                Pv = P.kind in ('valu', 'trans')
                Iv = I.kind in ('valu', 'trans')
                if Pv and I.kind == 'mfma' and (P.w & I.r):
                    k = max(k, 2)
                if P.kind == 'mfma':
                    big = {8: 12, 4: 8, 2: 5}[P.passes]
                    if I.kind == 'mfma':
                        if (P.w & (I.r - I.srcc)):
                            k = max(k, big)
                        if (P.w & I.srcc):
                            if not (P.w == I.srcc and P.passes == I.passes):
                                k = max(k, {8: 10, 4: 6, 2: 4}[P.passes])
                            elif P.passes == 2:
                                k = max(k, 2)
                    elif I.kind in ('valu', 'trans', 'ds', 'vmem', 'vmem_lds'):
                        if P.w & (I.r | I.w):
                            k = max(k, big)
                    if Iv and (P.srcc & I.w):
                        k = max(k, {8: 7, 4: 3, 2: 1}[P.passes])
                if P.mn.startswith('v_dot') and (P.w & (I.r | I.w)):
                    if not (I.mn == P.mn and I.w == P.w and len(I.r & P.w) == 1 and I.text.split(';')[0].strip().endswith(list(P.w)[0])
                            and I.text.count(list(P.w)[0] + ',') == 1):
                        k = max(k, 3)
                if Pv:
                    sw = {x for x in P.w if x[0] == 's' or x == 'vcc'}
                    if sw:
                        if Iv and (sw & I.r):
                            k = max(k, 2)
                        if I.kind in ('vmem', 'vmem_lds') and (sw & I.r):
                            k = max(k, 5)
                        if I.kind in ('salu', 'smem') and (sw & I.r):
                            k = max(k, 2)
                    if P.kind == 'trans' and I.kind in ('valu', 'mfma') and (P.w & I.r):
                        k = max(k, 1)
                    if Iv and (P.w & I.r):
                        if I.dpp or I.mn.startswith('v_permlane'):
                            k = max(k, 2)
                        if I.mn.startswith('v_readfirstlane') or I.mn.startswith('v_readlane'):
                            k = max(k, 1)
                    if 'exec' in P.w:
                        k = max(k, 5)
                if P.kind == 'salu' and 'm0' in P.w and I.kind == 'vmem_lds':
                    k = max(k, 1)
                if P.kind == 'vmem' and P.wide and (P.r & I.w):
                    k = max(k, 2)
                if k - d > req:
                    req = k - d
            return req
        for it in self.items:
            if isinstance(it, str):
                out.append(it); continue
            if it.kind == 'label':
                out.append(it.text); continue
            r = need(it)
            if r > 0:
                nop = parse(f's_nop {r - 1}', it.cond)
                out.append('    ' + nop.text + '    ; hazard pad')
                pf += r
                if not it.cond:
                    pu += r
            out.append('    ' + it.text)
            pf += it.states
            if not it.cond:
                pu += it.states
            hist.append((it, pf, pu))
            if len(hist) > 64:
                hist = hist[-48:]
        return '\n'.join(out) + '\n'
```

```python
import sys, struct
sys.path.insert(0, 'gen')
from dsl import Asm

NAME = 'parallel_sum__linear_attn_block__mixer_gmlp__prompt'

T1   = 0
PQ   = 8388608
Z1   = PQ + 2621440
Z2NT = Z1 + 3145728
KVT  = Z2NT + 3145728
ZP   = KVT + 65536
WT   = KVT + 131072
OH   = 19398656
STATS = OH + 5767168
WS_END = STATS + 16384

def f32(x):
    return '0x%08x' % struct.unpack('<I', struct.pack('<f', x))[0]

LOG2E = 1.4426950408889634
KBETA = 0.7978845608028654
KKAPPA = 0.044715

def srd(A, d, b, nbytes):
    A(f's_mov_b32 s{d}, s{b}')
    A(f's_and_b32 s{d+1}, s{b+1}, 0xffff')
    A(f's_mov_b32 s{d+2}, {nbytes}')
    A(f's_mov_b32 s{d+3}, 0x00020000')

import os
STAMP = os.environ.get('STAMP', '')
STAMP_BASE = 32 << 20
class Stamps:
    def __init__(self, A, on):
        self.A = A; self.on = on; self.n = 0
    def __call__(self):
        if not self.on: return
        A = self.A
        A(f's_memtime s[{64+2*self.n}:{65+2*self.n}]')
        if self.n == 0:
            A('s_memrealtime s[96:97]')
        A('s_waitcnt lgkmcnt(0)')
        A.ldq = []
        self.n += 1
    def flush(self, nwaves, kidx):
        if not self.on: return
        A = self.A
        A('s_waitcnt vmcnt(0)')
        A('s_memrealtime s[98:99]')
        self()
        A(f'''
        s_mov_b32 s60, s10
        s_and_b32 s61, s11, 0xffff
        s_mov_b32 s62, {64<<20}
        s_mov_b32 s63, 0x00020000
        s_lshl_b32 s33, s2, 3
        s_add_u32 s33, s33, s28
        s_lshl_b32 s33, s33, 7
        s_add_u32 s33, s33, {STAMP_BASE + (kidx<<20)}
        v_mov_b32 v4, 0
        ''')
        for i in range(self.n):
            A(f'v_mov_b32 v6, s{64+2*i}')
            A(f'v_mov_b32 v7, s{65+2*i}')
            A(f'buffer_store_dwordx2 v[6:7], v4, s[60:63], s33 offen offset:{8*i}')
            A('s_nop 1')
        A('s_getreg_b32 s94, hwreg(HW_REG_XCC_ID)')
        A('s_getreg_b32 s95, hwreg(HW_REG_HW_ID)')
        A('v_mov_b32 v6, s94')
        A('v_mov_b32 v7, s95')
        A(f'buffer_store_dwordx2 v[6:7], v4, s[60:63], s33 offen offset:104')
        A('s_nop 1')
        for i in range(2):
            A(f'v_mov_b32 v6, s{96+2*i}')
            A(f'v_mov_b32 v7, s{97+2*i}')
            A(f'buffer_store_dwordx2 v[6:7], v4, s[60:63], s33 offen offset:{112+8*i}')
            A('s_nop 1')

def rnd_pair(A, p, a, b):
    A(f'v_cvt_pk_bf16_f32 v{p}, v{a}, v{b}')
    A(f'v_lshlrev_b32 v{a}, 16, v{p}')
    A(f'v_and_b32 v{b}, 0xffff0000, v{p}')

G1_STAGE = 32768
G1_MB = 4 * G1_STAGE
G1_RI = G1_MB + 512
G1_CP = G1_RI + 512
G1_RP = G1_CP + 1024
G1_LDS = G1_RP + 4096

ACC = 32
FX = lambda b, ks, i: 64 + 48 * b + 12 * ks + 4 * i
FW = lambda b, ks: 64 + 48 * b + 12 * ks + 8
VA = lambda s, ks: 160 + 4 * s + ks
VB = lambda s, ks: 168 + 4 * s + ks
VOA = 176; VOB = 178
SM = 180
ONES = 200
MBR = 202
RS = 206
CS = 210
T0 = 64

def vr(b, n=4):
    return f'v[{b}:{b+n-1}]'

def g1_dma_setup(A):
    A("""
    v_and_b32 v1, 63, v0
    v_lshrrev_b32 v5, 3, v1
    s_lshl_b32 s33, s24, 7
    s_lshl_b32 s34, s28, 4
    s_add_u32 s33, s33, s34
    v_add_u32 v5, s33, v5
    s_movk_i32 s34, 1280
    v_mul_lo_u32 v5, v5, s34
    v_lshrrev_b32 v6, 4, v1
    v_and_b32 v7, 7, v1
    v_xor_b32 v8, v7, v6
    v_lshlrev_b32 v8, 4, v8
    """)
    A(f'v_add_u32 v{VOA}, v5, v8')
    A("""
    v_add_u32 v6, 4, v6
    v_xor_b32 v8, v7, v6
    v_lshlrev_b32 v8, 4, v8
    v_add_u32 v8, v5, v8
    """)
    A(f'v_add_u32 v{VOA+1}, {8*1280-1024}, v8')
    g1_dma_b_setup(A)

def g1_lane_setup(A):
    A("""
    v_and_b32 v2, 31, v1
    v_lshrrev_b32 v3, 5, v1
    v_lshrrev_b32 v4, 1, v1
    v_and_b32 v4, 7, v4
    v_xor_b32 v4, v3, v4
    v_lshlrev_b32 v4, 4, v4
    v_lshlrev_b32 v5, 7, v2
    v_add_u32 v4, v4, v5
    s_lshl_b32 s33, s29, 13
    v_add_u32 v4, s33, v4
    s_xor_b32 s31, s30, s29
    s_lshl_b32 s33, s31, 5
    v_xor_b32 v4, s33, v4
    """)
    for ks in range(4):
        A(f'v_xor_b32 v{VA(0,ks)}, {ks<<5}, v4')
        A(f'v_add_u32 v{VA(1,ks)}, 0x10000, v{VA(0,ks)}')
    A("""
    v_and_b32 v5, 15, v1
    v_lshrrev_b32 v5, 2, v5
    v_and_b32 v6, 3, v1
    v_lshlrev_b32 v7, 3, v3
    v_add_u32 v7, v7, v5
    v_lshlrev_b32 v7, 8, v7
    v_xor_b32 v8, s30, v5
    v_lshlrev_b32 v8, 6, v8
    v_add_u32 v7, v7, v8
    v_lshrrev_b32 v8, 4, v1
    v_and_b32 v8, 1, v8
    v_lshlrev_b32 v8, 5, v8
    v_add_u32 v7, v7, v8
    v_lshlrev_b32 v6, 3, v6
    v_add_u32 v7, v7, v6
    s_lshl_b32 s33, s31, 12
    s_add_u32 s33, s33, 0x4000
    """)
    for ks in range(4):
        A(f's_xor_b32 s34, s33, {ks<<12}')
        A(f'v_add_u32 v{VB(0,ks)}, s34, v7')
        A(f'v_add_u32 v{VB(1,ks)}, 0x10000, v{VB(0,ks)}')

def g1_dma_b_setup(A):
    A("""
    v_lshrrev_b32 v6, 4, v1
    s_lshl_b32 s33, s28, 3
    v_add_u32 v5, s33, v6
    v_mul_lo_u32 v5, v5, s26
    v_and_b32 v7, 15, v1
    v_lshrrev_b32 v7, 2, v7
    v_xor_b32 v7, v7, v6
    v_lshlrev_b32 v7, 2, v7
    v_and_b32 v8, 3, v1
    v_add_u32 v7, v7, v8
    v_lshlrev_b32 v7, 4, v7
    v_add_u32 v5, v5, v7
    """)
    A(f'v_add_u32 v{VOB}, s27, v5')
    A("""
    s_lshl_b32 s33, s26, 2
    s_sub_u32 s33, s33, 1024
    """)
    A(f'v_add_u32 v{VOB+1}, s33, v{VOB}')

def g1_dma(A, c, half=None):
    st = c % 4
    if half in (None, 0):
        A(f's_add_u32 s48, s32, {c}')
        A(f's_sub_u32 s49, s48, 10')
        A(f's_cmp_ge_u32 s48, 10')
        A(f's_cselect_b32 s48, s49, s48')
        A(f's_add_u32 m0, s35, {st*G1_STAGE}')
        A(f's_lshl_b32 s36, s48, 7')
        A.vm(('dma', c), f'buffer_load_dwordx4 v{VOA}, s[12:15], s36 offen lds')
        A.vm(('dma', c), f'buffer_load_dwordx4 v{VOA+1}, s[12:15], s36 offen offset:1024 lds')
    if half in (None, 1):
        A(f's_add_u32 m0, s35, {st*G1_STAGE+16384}')
        A(f's_mul_i32 s37, s38, s48')
        A.vm(('dma', c), f'buffer_load_dwordx4 v{VOB}, s[16:19], s37 offen lds')
        A.vm(('dma', c), f'buffer_load_dwordx4 v{VOB+1}, s[16:19], s37 offen offset:1024 lds')

def g1_read_list(c):
    st = c % 4; s = st >> 1; o = (st & 1) * G1_STAGE
    b = c & 1
    L = []
    for ks in range(4):
        L.append(f'ds_read_b128 {vr(FX(b,ks,0))}, v{VA(s,ks)} offset:{o}')
        L.append(f'ds_read_b64_tr_b16 {vr(FW(b,ks),2)}, v{VB(s,ks)} offset:{o}')
        L.append(f'ds_read_b64_tr_b16 {vr(FW(b,ks)+2,2)}, v{VB(s,ks)} offset:{o + 1024}')
        L.append(f'ds_read_b128 {vr(FX(b,ks,1))}, v{VA(s,ks)} offset:{o + 4096}')
    return L

def g1_touch(A, name, nb):
    if not os.environ.get('G1TOUCH'):
        return
    A(f"""
    s_cmp_lt_u32 s28, 3
    s_cbranch_scc0 {name}_tb
    v_and_b32 v4, 15, v1
    s_lshl_b32 s33, s24, 7
    s_lshl_b32 s34, s40, 4
    s_add_u32 s33, s33, s34
    v_add_u32 v4, s33, v4
    s_movk_i32 s34, 1280
    v_mul_lo_u32 v4, v4, s34
    v_lshrrev_b32 v5, 4, v1
    v_lshlrev_b32 v5, 7, v5
    v_add_u32 v4, v4, v5
    s_lshl_b32 s33, s28, 9
    buffer_load_dword v8, v4, s[12:15], s33 offen
    """)
    for q in range(1, nb):
        A('buffer_load_dword v8, v4, s[12:15], s33 offen')
    A(f's_branch {name}_td')
    A.label(f'{name}_tb')
    A(f"""
    v_lshrrev_b32 v4, 1, v1
    s_lshl_b32 s33, s28, 5
    s_mul_i32 s34, s41, {160*nb}
    s_add_u32 s33, s33, s34
    s_sub_u32 s33, s33, 96
    v_add_u32 v4, s33, v4
    v_mul_lo_u32 v4, v4, s26
    v_and_b32 v5, 1, v1
    v_lshlrev_b32 v5, 7, v5
    v_add_u32 v4, v4, v5
    s_mul_i32 s33, s26, 160
    s_add_u32 s33, s33, s27
    buffer_load_dword v8, v4, s[16:19], s27 offen
    """)
    for q in range(1, nb):
        A('buffer_load_dword v9, v4, s[16:19], s33 offen')
    A.label(f'{name}_td')
    A.vmq += ['t'] * nb

def g1_mainloop(A, swapped, rowstats, hook=None):
    NC = 10
    A(f'v_mov_b32 v{ONES}, 0x3f803f80')
    A(f'v_mov_b32 v{ONES+1}, 0x3f803f80')
    A.st()
    A.wait_vm(('dma', 0))
    A('s_barrier')
    A.st()
    for r in g1_read_list(0):
        A.ld('fr', r)
    for c in range(NC):
        b = c & 1
        A.wait_ld_all()
        RL = []
        if c < NC - 1:
            A.wait_vm(('dma', c + 1))
            A('s_barrier')
            if c in (0, 2, 5, 8):
                A.st()
            RL = g1_read_list(c + 1)
        dots = []
        def sm(acc, a, bsrc, first):
            cin = '0' if first else vr(acc)
            return f'v_mfma_f32_4x4x4_16b_bf16 {vr(acc)}, {vr(a,2)}, {vr(bsrc,2)}, {cin}'
        for hf in range(2):
            f0 = (c == 0 and hf == 0)
            dots.append(sm(SM + 16, FW(b, 0) + 2 * hf, ONES, f0))
            if rowstats:
                for i in range(2):
                    dots.append(sm(SM + 8 * i, FX(b, 0, i) + 2 * hf, ONES, f0))
                    dots.append(sm(SM + 8 * i + 4, FX(b, 0, i) + 2 * hf, FX(b, 0, i) + 2 * hf, f0))
            dots.append(sm(SM + 16, FW(b, 2) + 2 * hf, ONES, False))
        per = (len(dots) + 7) // 8
        for ks in range(4):
            for i in range(2):
                cin = '0' if (c == 0 and ks == 0) else vr(ACC+16*i,16)
                if swapped:
                    A(f'v_mfma_f32_32x32x16_bf16 {vr(ACC+16*i,16)}, {vr(FW(b,ks))}, {vr(FX(b,ks,i))}, {cin}')
                else:
                    A(f'v_mfma_f32_32x32x16_bf16 {vr(ACC+16*i,16)}, {vr(FX(b,ks,i))}, {vr(FW(b,ks))}, {cin}')
                for r in RL[:2]:
                    A.ld('fr', r)
                RL = RL[2:]
                n8 = 2 * ks + i
                todo = [2, 3] if c == 0 else ([c + 3] if c + 3 < NC else [])
                for ti, cc in enumerate(todo):
                    if n8 == 4 * ti:
                        g1_dma(A, cc, 0)
                    if n8 == 4 * ti + 2:
                        g1_dma(A, cc, 1)
                if n8 == 5 and hook is not None:
                    hook(c)
                for d in dots[:per]:
                    A(d)
                dots = dots[per:]
        assert not RL and not dots
    A.st()
    A("""
    v_and_b32 v4, 3, v1
    v_cmp_eq_u32 s[52:53], 1, v4
    v_cmp_eq_u32 s[54:55], 2, v4
    v_cmp_eq_u32 s[56:57], 3, v4
    """)
    sel = [(CS, SM + 16)] + ([(RS + q, SM + 4 * q) for q in range(4)] if rowstats else [])
    for dst, src in sel:
        A(f'v_cndmask_b32 v{dst}, v{src}, v{src+1}, s[52:53]')
    for dst, src in sel:
        A(f'v_cndmask_b32 v{dst}, v{dst}, v{src+2}, s[54:55]')
    for dst, src in sel:
        A(f'v_cndmask_b32 v{dst}, v{dst}, v{src+3}, s[56:57]')

def pk(op, d, a, b, c=None, neg0=False):
    t = f'v_pk_{op}_f32 v[{d}:{d+1}], v[{a}:{a+1}], v[{b}:{b+1}]'
    if c is not None:
        t += f', v[{c}:{c+1}]'
    if neg0:
        t += ' neg_lo:[1,0,0] neg_hi:[1,0,0]'
    return t

KC = 240
def epi_consts(A):
    vals = [1.0, LOG2E, 1e-6, KKAPPA, -2 * KBETA * LOG2E]
    for i, v in enumerate(vals):
        A(f'v_mov_b32 v{KC+2*i}, {f32(v)}')
        A(f'v_mov_b32 v{KC+2*i+1}, {f32(v)}')
C_ONE, C_L2E, C_EPS, C_KAP, C_CG = KC, KC + 2, KC + 4, KC + 6, KC + 8

def act_code(A, kind, regs, tmp):
    R0 = regs[0]
    P = tmp; OUT = tmp + 8; E = tmp + 16; G = tmp + 32
    if kind == 'plain':
        for k in range(8):
            A(f'v_cvt_pk_bf16_f32 v{OUT+k}, v{R0+2*k}, v{R0+2*k+1}')
        return OUT
    for k in range(8):
        A(f'v_cvt_pk_bf16_f32 v{P+k}, v{R0+2*k}, v{R0+2*k+1}')
    for k in range(8):
        A(f'v_lshlrev_b32 v{R0+2*k}, 16, v{P+k}')
        A(f'v_and_b32 v{R0+2*k+1}, 0xffff0000, v{P+k}')
    if kind == 'phi':
        for k in range(8):
            A(pk('mul', E + 2 * k, R0 + 2 * k, C_L2E))
        for k in range(16):
            A(f'v_exp_f32 v{E+k}, v{E+k}')
        for k in range(8):
            A(pk('add', G + 2 * k, R0 + 2 * k, C_ONE))
        for k in range(8):
            A(f'v_cvt_pk_bf16_f32 v{P+k}, v{E+2*k}, v{E+2*k+1}')
        for k in range(8):
            A(f'v_lshlrev_b32 v{E+2*k}, 16, v{P+k}')
            A(f'v_and_b32 v{E+2*k+1}, 0xffff0000, v{P+k}')
        for k in range(8):
            A(pk('add', E + 2 * k, E + 2 * k, C_EPS))
        for k0 in range(0, 16, 4):
            for k in range(k0, k0 + 4):
                A(f'v_cmp_lt_f32 s[{52+2*(k-k0)}:{53+2*(k-k0)}], 0, v{R0+k}')
            for k in range(k0, k0 + 4):
                A(f'v_cndmask_b32 v{E+k}, v{E+k}, v{G+k}, s[{52+2*(k-k0)}:{53+2*(k-k0)}]')
        for k in range(8):
            A(f'v_cvt_pk_bf16_f32 v{OUT+k}, v{E+2*k}, v{E+2*k+1}')
        return OUT
    if kind == 'gelu':
        for k in range(8):
            A(pk('mul', E + 2 * k, R0 + 2 * k, R0 + 2 * k))
        for k in range(8):
            A(pk('mul', G + 2 * k, R0 + 2 * k, C_CG))
        for k in range(8):
            A(pk('fma', E + 2 * k, E + 2 * k, C_KAP, C_ONE))
        for k in range(8):
            A(pk('mul', E + 2 * k, E + 2 * k, G + 2 * k))
        for k in range(16):
            A(f'v_exp_f32 v{E+k}, v{E+k}')
        for k in range(8):
            A(pk('add', E + 2 * k, E + 2 * k, C_ONE))
        for k in range(16):
            A(f'v_rcp_f32 v{E+k}, v{E+k}')
        for k in range(8):
            A(pk('mul', E + 2 * k, E + 2 * k, R0 + 2 * k))
        for k in range(8):
            A(f'v_cvt_pk_bf16_f32 v{OUT+k}, v{E+2*k}, v{E+2*k+1}')
        return OUT
    raise ValueError(kind)

def swap_store(A, OUT, voff, srd_, soff, imm0, gstep=32):
    for gp in range(2):
        b = OUT + 4 * gp
        A(f'v_permlane32_swap_b32 v{b}, v{b+2}')
        A(f'v_permlane32_swap_b32 v{b+1}, v{b+3}')
    for gp in range(2):
        b = OUT + 4 * gp
        A.vm('st', f'buffer_store_dwordx4 {vr(b)}, v{voff}, s[{srd_}:{srd_+3}], s{soff} offen offset:{imm0 + gstep*gp}')

def k1_epilogue(A, kind):
    CS2 = T0 + 6
    MBS = [T0 + 8, T0 + 40]; RIS = [T0 + 24, T0 + 56]; TMP = T0 + 72
    for i in range(2):
        for g in range(4):
            A.ld(('mb', i), f'ds_read_b128 {vr(MBS[i]+4*g)}, v{T0+4} offset:{(32*i+8*g)*4}')
            A.ld(('mb', i), f'ds_read_b128 {vr(RIS[i]+4*g)}, v{T0+4} offset:{512+(32*i+8*g)*4}')
    for i in range(2):
        A.wait_ld(('mb', i))
        regs = [ACC + 16 * i + k for k in range(16)]
        for k in range(8):
            A(pk('fma', regs[2*k], MBS[i] + 2 * k, CS2, regs[2*k], neg0=True))
        for k in range(8):
            A(pk('mul', regs[2*k], regs[2*k], RIS[i] + 2 * k))
        OUT = act_code(A, kind, regs, TMP + 48 * i if kind != 'x' else TMP)
        if kind == 'gelu':
            swap_store(A, OUT, T0 + 5, 20, 39, 64 * i)
        else:
            swap_store(A, OUT, T0 + 2, 20, 42, 1024 * i, 512)

def g1_entry(A, done_lbl):
    A(f"""
    s_cmp_ge_u32 s2, 256
    s_cbranch_scc1 {done_lbl}
    s_load_dwordx4 s[4:7], s[0:1], 0
    s_load_dwordx2 s[8:9], s[0:1], 32
    s_load_dwordx2 s[10:11], s[0:1], 80
    v_lshrrev_b32 v2, 6, v0
    s_nop 0
    v_readfirstlane_b32 s28, v2
    """)

def gen_k1(A):
    A.label('k1_kernel')
    A.st()
    g1_entry(A, 'k1_done')
    A("""
    s_and_b32 s33, s2, 7
    s_lshr_b32 s34, s2, 3
    s_lshr_b32 s24, s33, 1
    s_lshl_b32 s24, s24, 2
    s_lshr_b32 s41, s34, 3
    s_add_u32 s24, s24, s41
    s_and_b32 s25, s33, 1
    s_lshl_b32 s25, s25, 3
    s_and_b32 s40, s34, 7
    s_add_u32 s25, s25, s40
    s_lshr_b32 s29, s28, 2
    s_and_b32 s30, s28, 3
    s_movk_i32 s26, 3840
    s_mov_b32 s18, 2457600
    s_movk_i32 s33, 1280
    s_cmp_lt_u32 s25, 10
    s_cselect_b32 s26, s26, 3072
    s_cselect_b32 s18, s18, 1966080
    s_cselect_b32 s33, s33, -1024
    s_lshl_b32 s27, s25, 8
    s_add_i32 s27, s27, s33
    s_mov_b32 s19, 0x00020000
    s_lshl_b32 s35, s28, 11
    s_lshl_b32 s38, s26, 6
    s_lshr_b32 s32, s2, 3
    s_mul_i32 s33, s32, 6554
    s_lshr_b32 s33, s33, 16
    s_mul_i32 s33, s33, 10
    s_sub_u32 s32, s32, s33
    """)
    if os.environ.get('NOG1ROT'):
        A('s_mov_b32 s32, 0')
    g1_dma_setup(A)
    A("""
    s_waitcnt lgkmcnt(0)
    s_cmp_lt_u32 s25, 10
    s_cselect_b32 s16, s6, s8
    s_cselect_b32 s17, s7, s9
    s_and_b32 s17, s17, 0xffff
    """)
    srd(A, 12, 4, 2048 * 1280)
    g1_touch(A, 'k1', 1)
    for c in range(2):
        g1_dma(A, c)
    srd(A, 20, 10, WS_END)
    g1_lane_setup(A)
    epi_consts(A)
    def k1_hook(c):
        if os.environ.get('NOPF') or c not in (6, 7):
            return
        if c == 6:
            A('s_load_dwordx2 s[56:57], s[0:1], 40')
            return
        if os.environ.get('K1WSP', '1') == '1':
            A(f"""
            s_lshl_b32 s42, s2, 3
            s_add_u32 s42, s42, s28
            s_lshl_b32 s42, s42, 12
            v_and_b32 v5, 31, v1
            v_lshlrev_b32 v5, 7, v5
            s_and_b32 s57, s57, 0xffff
            s_mov_b32 s58, {2048*4096}
            s_mov_b32 s59, 0x00020000
            """)
            A.vm('pf', 'buffer_load_dword v8, v5, s[56:59], s42 offen')
        A(f"""
        s_lshr_b32 s42, s2, 3
        s_mul_i32 s42, s42, 20
        s_and_b32 s43, s28, 3
        s_lshl_b32 s43, s43, 6
        v_add_u32 v4, s43, v1
        v_lshrrev_b32 v5, 4, v4
        v_and_b32 v6, 15, v4
        s_cmp_lt_u32 s28, 4
        s_cselect_b32 s44, s6, s8
        s_cselect_b32 s45, s7, s9
        s_movk_i32 s43, 3840
        s_mov_b32 s46, 2457600
        s_cselect_b32 s43, s43, 3072
        s_cselect_b32 s46, s46, 1966080
        s_and_b32 s45, s45, 0xffff
        s_mov_b32 s47, 0x00020000
        v_add_u32 v5, s42, v5
        v_mul_lo_u32 v5, v5, s43
        v_min_u32 v6, 11, v6
        v_lshl_add_u32 v5, v6, 7, v5
        s_lshl_b32 s43, s43, 4
        """)
        A.vm('pf', 'buffer_load_dword v8, v5, s[44:47], 0 offen')
        A.vm('pf', 'buffer_load_dword v8, v5, s[44:47], s43 offen')
    g1_mainloop(A, swapped=False, rowstats=True, hook=k1_hook)
    p = T0
    for r in (RS, RS + 1, RS + 2, RS + 3, CS):
        A(f'v_mov_b32 v{p}, v{r}')
        A(f'v_permlane32_swap_b32 v{r}, v{p}')
        A(f'v_add_f32 v{r}, v{r}, v{p}')
    A(f"""
    s_lshl_b32 s33, s30, 10
    s_lshl_b32 s34, s29, 9
    s_add_u32 s33, s33, s34
    s_add_u32 s33, s33, {G1_RP}
    v_lshlrev_b32 v{T0+1}, 3, v2
    v_add_u32 v{T0+1}, s33, v{T0+1}
    ds_write_b64 v{T0+1}, v[{RS}:{RS+1}]
    ds_write_b64 v{T0+1}, v[{RS+2}:{RS+3}] offset:256
    s_lshl_b32 s33, s30, 7
    s_add_u32 s33, s33, {G1_CP}
    v_lshlrev_b32 v{T0+2}, 2, v2
    v_add_u32 v{T0+2}, s33, v{T0+2}
    s_lshl_b32 s34, s29, 9
    v_add_u32 v{T0+3}, s34, v{T0+2}
    ds_write_b32 v{T0+3}, v{CS}
    s_waitcnt lgkmcnt(0)
    s_barrier
    ds_read_b32 v{T0+6}, v{T0+2}
    ds_read_b32 v{T0+7}, v{T0+2} offset:512
    s_cmp_lt_u32 s28, 2
    s_cbranch_scc0 k1_nofin
    v_lshlrev_b32 v{T0+1}, 3, v0
    v_add_u32 v{T0+1}, {G1_RP}, v{T0+1}
    ds_read_b64 v[{T0+8}:{T0+9}], v{T0+1}
    ds_read_b64 v[{T0+10}:{T0+11}], v{T0+1} offset:1024
    ds_read_b64 v[{T0+12}:{T0+13}], v{T0+1} offset:2048
    ds_read_b64 v[{T0+14}:{T0+15}], v{T0+1} offset:3072
    s_waitcnt lgkmcnt(0)
    v_pk_add_f32 v[{T0+8}:{T0+9}], v[{T0+8}:{T0+9}], v[{T0+10}:{T0+11}]
    v_pk_add_f32 v[{T0+12}:{T0+13}], v[{T0+12}:{T0+13}], v[{T0+14}:{T0+15}]
    v_pk_add_f32 v[{T0+8}:{T0+9}], v[{T0+8}:{T0+9}], v[{T0+12}:{T0+13}]
    """)
    a, b_, pp = T0 + 8, T0 + 9, T0 + 10
    A(f'v_mul_f32 v{a}, {f32(1/640)}, v{a}')
    A(f'v_mul_f32 v{b_}, {f32(1/640)}, v{b_}')
    A(f'v_fma_f32 v{b_}, -v{a}, v{a}, v{b_}')
    A(f'v_max_f32 v{b_}, 0, v{b_}')
    rnd_pair(A, pp, a, b_)
    A(f'v_add_f32 v{b_}, {f32(1e-5)}, v{b_}')
    A(f'v_cvt_pk_bf16_f32 v{pp}, v{b_}, v{b_}')
    A(f'v_lshlrev_b32 v{b_}, 16, v{pp}')
    A(f'v_sqrt_f32 v{b_}, v{b_}')
    A(f'v_cvt_pk_bf16_f32 v{pp}, v{b_}, v{b_}')
    A(f'v_lshlrev_b32 v{b_}, 16, v{pp}')
    A(f'v_rcp_f32 v{b_}, v{b_}')
    A(f"""
    v_lshlrev_b32 v{T0+1}, 2, v0
    v_add_u32 v{T0+11}, {G1_MB}, v{T0+1}
    ds_write_b32 v{T0+11}, v{a}
    ds_write_b32 v{T0+11}, v{b_} offset:512
    s_cmp_lg_u32 s25, 0
    s_cbranch_scc1 k1_nofin
    v_lshlrev_b32 v{T0+1}, 3, v0
    s_lshl_b32 s33, s24, 10
    s_add_u32 s33, s33, {STATS}
    buffer_store_dwordx2 v[{a}:{b_}], v{T0+1}, s[20:23], s33 offen
    """)
    A.label('k1_nofin')
    A(f"""
    s_waitcnt lgkmcnt(0)
    v_add_f32 v{T0+6}, v{T0+6}, v{T0+7}
    s_lshl_b32 s33, s29, 6
    v_lshlrev_b32 v{T0+4}, 2, v3
    v_add_u32 v{T0+4}, s33, v{T0+4}
    v_lshlrev_b32 v{T0+4}, 2, v{T0+4}
    v_add_u32 v{T0+4}, {G1_MB}, v{T0+4}
    v_mov_b32 v{T0+7}, v{T0+6}
    s_lshl_b32 s34, s30, 5
    v_add_u32 v{T0+5}, s34, v2
    v_lshlrev_b32 v{T0+5}, 12, v{T0+5}
    v_lshlrev_b32 v{T0+1}, 3, v3
    v_add_u32 v{T0+1}, s33, v{T0+1}
    v_lshlrev_b32 v{T0+1}, 1, v{T0+1}
    v_add_u32 v{T0+5}, v{T0+5}, v{T0+1}
    s_lshl_b32 s39, s25, 19
    s_lshl_b32 s33, s24, 12
    s_add_u32 s42, s39, s33
    s_lshl_b32 s33, s24, 8
    s_add_u32 s39, s39, s33
    v_lshrrev_b32 v{T0+2}, 4, v1
    v_and_b32 v{T0+2}, 1, v{T0+2}
    s_lshl_b32 s33, s30, 1
    v_add_u32 v{T0+2}, s33, v{T0+2}
    v_lshlrev_b32 v{T0+2}, 16, v{T0+2}
    v_and_b32 v{T0+1}, 15, v1
    v_lshl_add_u32 v{T0+2}, v{T0+1}, 4, v{T0+2}
    v_lshl_add_u32 v{T0+2}, v3, 8, v{T0+2}
    s_lshl_b32 s33, s29, 11
    v_add_u32 v{T0+2}, s33, v{T0+2}
    s_barrier
    s_cmp_lt_u32 s25, 5
    s_cbranch_scc1 k1_phi
    s_cmp_lt_u32 s25, 10
    s_cbranch_scc1 k1_plain
    """)
    A.reset_counters()
    A.st()
    k1_epilogue(A, 'gelu')
    n0 = A.st.n
    A.st.flush(8, 0)
    A.st.n = n0 - 1
    A('s_endpgm')
    A.label('k1_phi')
    A('s_nop 4')
    A.reset_counters()
    A.st()
    k1_epilogue(A, 'phi')
    A.st.flush(8, 0)
    A.st.n = n0 - 1
    A('s_endpgm')
    A.label('k1_plain')
    A('s_nop 4')
    A.reset_counters()
    A.st()
    k1_epilogue(A, 'plain')
    A.st.flush(8, 0)
    A.label('k1_done')
    A('s_endpgm')

def k2_epilogue(A, kind):
    CS4 = T0 + 8; CS4B = T0 + 24; MB2 = T0 + 40; TMP = T0 + 48
    for g in range(4):
        A.ld('cs', f'ds_read_b128 {vr(CS4+4*g)}, v{T0+4} offset:{32*g}')
        A.ld('cs', f'ds_read_b128 {vr(CS4B+4*g)}, v{T0+4} offset:{512+32*g}')
    A.wait_vm('stats')
    for i in range(2):
        A(f'v_mov_b32 v{MB2+4*i}, v{MBR+2*i}')
        A(f'v_mov_b32 v{MB2+4*i+1}, v{MBR+2*i}')
        A(f'v_mov_b32 v{MB2+4*i+2}, v{MBR+2*i+1}')
        A(f'v_mov_b32 v{MB2+4*i+3}, v{MBR+2*i+1}')
    A.wait_ld_all()
    for k in range(8):
        A(pk('add', CS4 + 2 * k, CS4 + 2 * k, CS4B + 2 * k))
    for i in range(2):
        regs = [ACC + 16 * i + k for k in range(16)]
        for k in range(8):
            A(pk('fma', regs[2*k], MB2 + 4 * i, CS4 + 2 * k, regs[2*k], neg0=True))
        for k in range(8):
            A(pk('mul', regs[2*k], regs[2*k], MB2 + 4 * i + 2))
        OUT = act_code(A, kind, regs, TMP + 48 * i)
        swap_store(A, OUT, T0 + 5 + (2 if i else 0), 20, 39, 0)

def gen_k2(A):
    A.label('k2_kernel')
    A.st()
    g1_entry(A, 'k2_done')
    A("""
    s_cmp_ge_u32 s2, 240
    s_cbranch_scc1 k2_wt
    s_cmp_ge_u32 s2, 208
    s_cbranch_scc1 k2_kv
    s_cmp_ge_u32 s2, 176
    s_cbranch_scc1 k2_ln
    s_and_b32 s33, s2, 7
    s_lshr_b32 s34, s2, 3
    s_lshl_b32 s24, s33, 1
    s_cmp_ge_u32 s34, 11
    s_cselect_b32 s41, 1, 0
    s_cselect_b32 s25, 11, 0
    s_add_u32 s24, s24, s41
    s_sub_u32 s25, s34, s25
    s_and_b32 s40, s25, 7
    s_lshr_b32 s29, s28, 2
    s_and_b32 s30, s28, 3
    s_movk_i32 s26, 3840
    s_mov_b32 s18, 2457600
    s_cmp_lt_u32 s25, 5
    s_cselect_b32 s26, s26, 3072
    s_cselect_b32 s18, s18, 1966080
    s_cselect_b32 s33, 0, -1280
    s_lshl_b32 s27, s25, 8
    s_add_i32 s27, s27, s33
    s_mov_b32 s19, 0x00020000
    s_lshl_b32 s35, s28, 11
    s_lshl_b32 s38, s26, 6
    s_lshr_b32 s32, s2, 3
    s_mul_i32 s33, s32, 6554
    s_lshr_b32 s33, s33, 16
    s_mul_i32 s33, s33, 10
    s_sub_u32 s32, s32, s33
    """)
    if os.environ.get('NOG1ROT'):
        A('s_mov_b32 s32, 0')
    g1_dma_setup(A)
    A("""
    s_waitcnt lgkmcnt(0)
    s_cmp_lt_u32 s25, 5
    s_cselect_b32 s16, s6, s8
    s_cselect_b32 s17, s7, s9
    s_and_b32 s17, s17, 0xffff
    """)
    srd(A, 12, 4, 2048 * 1280)
    g1_touch(A, 'k2', 2)
    for c in range(2):
        g1_dma(A, c)
    srd(A, 20, 10, WS_END)
    g1_lane_setup(A)
    A(f"""
    s_lshl_b32 s33, s24, 10
    s_lshl_b32 s34, s29, 9
    s_add_u32 s33, s33, s34
    s_add_u32 s33, s33, {STATS}
    v_lshlrev_b32 v4, 3, v2
    """)
    A.vm('stats', f'buffer_load_dwordx2 v[{MBR}:{MBR+1}], v4, s[20:23], s33 offen')
    A.vm('stats', f'buffer_load_dwordx2 v[{MBR+2}:{MBR+3}], v4, s[20:23], s33 offen offset:256')
    epi_consts(A)
    def k2_hook(c):
        if os.environ.get('NOPF') or os.environ.get('K2GPF', '1') != '1' or c not in (6, 7):
            return
        if c == 6:
            A(f"""
            s_load_dwordx2 s[44:45], s[0:1], 40
            s_and_b32 s42, s2, 7
            s_lshr_b32 s42, s42, 1
            s_lshl_b32 s42, s42, 21
            s_lshr_b32 s43, s2, 3
            s_lshl_b32 s43, s43, 3
            s_add_u32 s43, s43, s28
            s_mul_i32 s43, s43, 12288
            s_add_u32 s42, s42, s43
            v_lshlrev_b32 v5, 7, v1
            s_mov_b32 s46, {2048*4096}
            s_mov_b32 s47, 0x00020000
            """)
        else:
            A(f"""
            s_and_b32 s45, s45, 0xffff
            s_add_u32 s43, s42, 8192
            """)
            A.vm('pf', 'buffer_load_dword v8, v5, s[44:47], s42 offen')
            A.vm('pf', 'buffer_load_dword v8, v5, s[44:47], s43 offen')
    g1_mainloop(A, swapped=True, rowstats=False, hook=k2_hook)
    vq = list(A.vmq)
    A(f"""
    v_mov_b32 v{T0}, v{CS}
    v_permlane32_swap_b32 v{CS}, v{T0}
    v_add_f32 v{CS}, v{CS}, v{T0}
    s_lshl_b32 s33, s30, 7
    s_add_u32 s33, s33, {G1_CP}
    s_lshl_b32 s34, s29, 9
    s_add_u32 s34, s34, s33
    v_lshlrev_b32 v{T0+4}, 2, v2
    v_add_u32 v{T0+4}, s34, v{T0+4}
    ds_write_b32 v{T0+4}, v{CS}
    v_lshlrev_b32 v{T0+4}, 4, v3
    v_add_u32 v{T0+4}, s33, v{T0+4}
    s_lshl_b32 s33, s29, 6
    s_movk_i32 s34, 1280
    s_cmp_lt_u32 s25, 5
    s_cselect_b32 s34, s34, 1536
    v_add_u32 v{T0+5}, s33, v2
    v_mul_lo_u32 v{T0+5}, v{T0+5}, s34
    s_lshl_b32 s33, s30, 6
    v_lshlrev_b32 v{T0+7}, 4, v3
    v_add_u32 v{T0+7}, s33, v{T0+7}
    v_add_u32 v{T0+5}, v{T0+5}, v{T0+7}
    s_lshl_b32 s33, s34, 5
    v_add_u32 v{T0+7}, s33, v{T0+5}
    s_lshl_b32 s33, s34, 7
    s_mul_i32 s39, s33, s24
    s_add_u32 s39, s39, s27
    s_mov_b32 s33, {PQ}
    s_cmp_lt_u32 s25, 5
    s_cselect_b32 s33, s33, {Z1}
    s_add_u32 s39, s39, s33
    s_waitcnt lgkmcnt(0)
    s_barrier
    s_cmp_lt_u32 s25, 5
    s_cbranch_scc1 k2_phi
    """)
    A.reset_counters(); A.vmq = list(vq)
    k2_epilogue(A, 'gelu')
    n0 = A.st.n
    A.st.flush(8, 1)
    A.st.n = n0
    A('s_endpgm')
    A.label('k2_phi')
    A('s_nop 4')
    A.reset_counters(); A.vmq = list(vq)
    k2_epilogue(A, 'phi')
    A.st.flush(8, 1)
    A.st.n = 1
    A('s_endpgm')
    gen_k2_ln(A)
    gen_k2_kv(A)
    gen_k2_wt(A)
    A.label('k2_done')
    A('s_endpgm')

def lane_reduce8(A, regs, tmp):
    for r in regs:
        A(f'v_add_f32_dpp v{r}, v{r}, v{r} row_ror:8 row_mask:0xf bank_mask:0xf')
    for r in regs:
        A(f'v_mov_b32 v{tmp}, v{r}')
        A(f'v_permlane16_swap_b32 v{r}, v{tmp}')
        A(f'v_add_f32 v{r}, v{r}, v{tmp}')
    for r in regs:
        A(f'v_mov_b32 v{tmp}, v{r}')
        A(f'v_permlane32_swap_b32 v{r}, v{tmp}')
        A(f'v_add_f32 v{r}, v{r}, v{tmp}')

def gen_k2_ln(A):
    A.label('k2_ln')
    A.reset_counters()
    X = 16; U = 64; S = 160; M = 168; R = 176; TM = 184; RD = 192
    A('''
    s_waitcnt lgkmcnt(0)
    s_sub_u32 s24, s2, 176
    ''')
    srd(A, 20, 10, WS_END)
    A(f'''
    v_and_b32 v1, 63, v0
    v_lshrrev_b32 v2, 3, v1
    v_and_b32 v3, 7, v1
    s_mul_i32 s33, s28, 96
    v_add_u32 v2, s33, v2
    v_lshlrev_b32 v2, 12, v2
    v_lshlrev_b32 v4, 4, v3
    v_add_u32 v2, v2, v4
    s_lshl_b32 s33, s24, 7
    v_add_u32 v2, s33, v2
    ''')
    for it in range(12):
        A(f's_mov_b32 s34, {1280*4096 + 32768*it}')
        A.vm(('x', it), f'buffer_load_dwordx4 {vr(X+4*it)}, v2, s[20:23], s34 offen')
    for e in range(8):
        A(f'v_mov_b32 v{S+e}, 0')
    A(f'''
    v_lshrrev_b32 v7, 2, v3
    v_lshlrev_b32 v7, 10, v7
    v_lshrrev_b32 v8, 3, v1
    v_lshlrev_b32 v8, 4, v8
    v_add_u32 v7, v7, v8
    v_and_b32 v8, 3, v3
    v_lshlrev_b32 v8, 8, v8
    v_add_u32 v7, v7, v8
    s_mul_i32 s35, s28, {6*65536}
    s_lshl_b32 s33, s24, 11
    s_add_u32 s35, s35, s33
    s_add_u32 s35, s35, {Z2NT}
    ''')
    A(f'''
    v_lshlrev_b32 v5, 5, v3
    s_lshl_b32 s33, s28, 8
    v_add_u32 v6, s33, v5
    ''')
    for it in range(12):
        A.wait_vm(('x', it))
        for d in range(4):
            A(f'v_lshlrev_b32 v{U+8*it+2*d}, 16, v{X+4*it+d}')
            A(f'v_and_b32 v{U+8*it+2*d+1}, 0xffff0000, v{X+4*it+d}')
        for e in range(8):
            A(f'v_add_f32 v{S+e}, v{S+e}, v{U+8*it+e}')
    def xwave(base_off, dst):
        lane_reduce8(A, [S + e for e in range(8)], TM)
        A(f'ds_write_b128 v6, {vr(S)} offset:{base_off}')
        A(f'ds_write_b128 v6, {vr(S+4)} offset:{base_off+16}')
        A('s_waitcnt lgkmcnt(0)')
        A('s_barrier')
        for w in range(8):
            A(f'ds_read_b128 {vr(RD+8*w)}, v5 offset:{base_off+256*w}')
            A(f'ds_read_b128 {vr(RD+8*w+4)}, v5 offset:{base_off+256*w+16}')
        A('s_waitcnt lgkmcnt(0)')
        for e in range(8):
            A(f'v_add_f32 v{dst+e}, v{RD+e}, v{RD+8+e}')
        for w in range(2, 8):
            for e in range(8):
                A(f'v_add_f32 v{dst+e}, v{dst+e}, v{RD+8*w+e}')
        for e in range(8):
            A(f'v_mul_f32 v{dst+e}, {f32(1/768)}, v{dst+e}')
    xwave(0, M)
    for e in range(8):
        A(f'v_mov_b32 v{S+e}, 0')
    for it in range(12):
        for e in range(8):
            A(f'v_sub_f32 v{TM+e}, v{U+8*it+e}, v{M+e}')
        for e in range(8):
            A(f'v_fmac_f32 v{S+e}, v{TM+e}, v{TM+e}')
    xwave(4096, R)
    for e in range(8):
        rnd_pair(A, TM, M + e, R + e)
    for e in range(8):
        A(f'v_add_f32 v{R+e}, {f32(1e-5)}, v{R+e}')
    for e in range(0, 8, 2):
        rnd_pair(A, TM, R + e, R + e + 1)
    for e in range(8):
        A(f'v_sqrt_f32 v{R+e}, v{R+e}')
    for e in range(0, 8, 2):
        rnd_pair(A, TM, R + e, R + e + 1)
    for e in range(8):
        A(f'v_rcp_f32 v{R+e}, v{R+e}')
    for it in range(12):
        for e in range(8):
            A(f'v_sub_f32 v{U+8*it+e}, v{U+8*it+e}, v{M+e}')
        for e in range(0, 8, 2):
            rnd_pair(A, TM + e // 2, U + 8 * it + e, U + 8 * it + e + 1)
        for e in range(8):
            A(f'v_mul_f32 v{U+8*it+e}, v{U+8*it+e}, v{R+e}')
        for d in range(4):
            A(f'v_cvt_pk_bf16_f32 v{X+4*it+d}, v{U+8*it+2*d}, v{U+8*it+2*d+1}')
        A(f's_add_u32 s34, s35, {(it>>1)*65536}')
        A(f'buffer_store_dwordx4 {vr(X+4*it)}, v7, s[20:23], s34 offen offset:{(it&1)*128}')
    A.st.flush(8, 1)
    A.st.n = 1
    A('s_endpgm')

def wsp_prefetch(A, jexpr_code):
    if os.environ.get('NOPF') or not os.environ.get('AUXPF'):
        return
    A(f"""
    s_load_dwordx2 s[44:45], s[0:1], 40
    {jexpr_code}
    s_lshl_b32 s43, s43, 3
    s_add_u32 s43, s43, s28
    s_mul_i32 s43, s43, 43776
    s_and_b32 s42, s2, 7
    s_lshr_b32 s42, s42, 1
    s_lshl_b32 s42, s42, 21
    s_add_u32 s42, s42, s43
    v_and_b32 v5, 63, v0
    v_lshlrev_b32 v5, 7, v5
    s_mov_b32 s46, {2048*4096}
    s_mov_b32 s47, 0x00020000
    s_waitcnt lgkmcnt(0)
    s_and_b32 s45, s45, 0xffff
    """)
    for q in range(6):
        A.vm('pf', 'buffer_load_dword v8, v5, s[44:47], s42 offen')
        A('s_add_u32 s42, s42, 8192')

def gen_k2_kv(A):
    A.label('k2_kv')
    A.reset_counters()
    FR = 16; KVA = 144; ZA = 160; ON = 168; TM = 172
    A("""
    s_waitcnt lgkmcnt(0)
    s_sub_u32 s24, s2, 208
    """)
    wsp_prefetch(A, 's_lshr_b32 s43, s24, 3')
    srd(A, 20, 10, WS_END)
    A(f"""
    v_and_b32 v1, 63, v0
    v_and_b32 v2, 15, v1
    v_lshrrev_b32 v3, 4, v1
    s_mul_i32 s33, s24, 20
    s_lshr_b32 s25, s33, 4
    s_and_b32 s26, s33, 15
    s_lshl_b32 s33, s25, 16
    s_lshl_b32 s34, s28, 13
    s_add_u32 s33, s33, s34
    v_lshlrev_b32 v4, 4, v1
    v_add_u32 v4, s33, v4
    v_add_u32 v5, 0x10000, v4
    s_mov_b32 s34, {40*65536}
    s_mov_b32 s35, {40*65536+4096}
    s_movk_i32 s36, 4096
    """)
    for q in range(8):
        so_k = '0' if q < 4 else 's36'
        so_v = 's34' if q < 4 else 's35'
        o = 1024 * (q & 3)
        A.vm(('f', q), f'buffer_load_dwordx4 {vr(FR+16*q)}, v4, s[20:23], {so_k} offen offset:{o}')
        A.vm(('f', q), f'buffer_load_dwordx4 {vr(FR+16*q+4)}, v5, s[20:23], {so_k} offen offset:{o}')
        A.vm(('f', q), f'buffer_load_dwordx4 {vr(FR+16*q+8)}, v4, s[20:23], {so_v} offen offset:{o}')
        A.vm(('f', q), f'buffer_load_dwordx4 {vr(FR+16*q+12)}, v5, s[20:23], {so_v} offen offset:{o}')
    for i in range(24):
        A(f'v_mov_b32 v{KVA+i}, 0')
    for i in range(4):
        A(f'v_mov_b32 v{ON+i}, 0x3f803f80')
    for q in range(8):
        A.wait_vm(('f', q))
        for a_ in range(2):
            for b_ in range(2):
                d = KVA + 8 * a_ + 4 * b_
                A(f'v_mfma_f32_16x16x32_bf16 {vr(d)}, {vr(FR+16*q+4*a_)}, {vr(FR+16*q+8+4*b_)}, {vr(d)}')
            A(f'v_mfma_f32_16x16x32_bf16 {vr(ZA+4*a_)}, {vr(FR+16*q+4*a_)}, {vr(ON)}, {vr(ZA+4*a_)}')
    A(f"""
    s_lshl_b32 s33, s28, 12
    v_lshlrev_b32 v6, 7, v2
    v_lshl_add_u32 v6, v3, 4, v6
    v_add_u32 v6, s33, v6
    s_lshl_b32 s33, s28, 7
    v_lshlrev_b32 v7, 4, v3
    v_add_u32 v7, s33, v7
    """)
    for a_ in range(2):
        for b_ in range(2):
            A(f'ds_write_b128 v6, {vr(KVA+8*a_+4*b_)} offset:{2048*b_ + 64*a_}')
        A(f'ds_write_b128 v7, {vr(ZA+4*a_)} offset:{32768+64*a_}')
    A(f"""
    s_waitcnt lgkmcnt(0)
    s_barrier
    v_lshrrev_b32 v8, 4, v0
    v_add_u32 v8, s26, v8
    v_min_u32 v8, 31, v8
    v_and_b32 v9, 15, v0
    v_lshlrev_b32 v10, 1, v9
    v_add_u32 v10, s26, v10
    v_min_u32 v10, 30, v10
    v_lshlrev_b32 v10, 2, v10
    v_lshl_add_u32 v8, v8, 7, v10
    """)
    AF = 16; BF = 48
    for w in range(8):
        A(f'ds_read_b64 {vr(AF+2*w,2)}, v8 offset:{4096*w}')
        A(f'ds_read_b64 {vr(BF+2*w,2)}, v10 offset:{32768+128*w}')
    A('s_waitcnt lgkmcnt(0)')
    for base in (AF, BF):
        for w in range(1, 8):
            A(f'v_add_f32 v{base}, v{base}, v{base+2*w}')
            A(f'v_add_f32 v{base+1}, v{base+1}, v{base+2*w+1}')
    A(f"""
    v_cvt_pk_bf16_f32 v{TM}, v{AF}, v{AF+1}
    v_cvt_pk_bf16_f32 v{TM+1}, v{BF}, v{BF+1}
    v_cmp_gt_u32 vcc, 10, v9
    s_nop 1
    v_cndmask_b32 v{TM}, 0, v{TM}, vcc
    v_cndmask_b32 v{TM+1}, 0, v{TM+1}, vcc
    v_lshlrev_b32 v11, 2, v0
    s_lshl_b32 s33, s24, 11
    s_add_u32 s33, s33, {KVT}
    buffer_store_dword v{TM}, v11, s[20:23], s33 offen
    v_cmp_gt_u32 vcc, 16, v0
    v_mov_b32 v12, 0x7ffffff0
    s_nop 0
    v_cndmask_b32 v11, v12, v11, vcc
    s_lshl_b32 s33, s24, 6
    s_add_u32 s33, s33, {ZP}
    buffer_store_dword v{TM+1}, v11, s[20:23], s33 offen
    """)
    A.st.flush(8, 1)
    A.st.n = 1
    A('s_endpgm')

def gen_k2_wt(A):
    A.label('k2_wt')
    A.reset_counters()
    A('s_waitcnt lgkmcnt(0)')
    wsp_prefetch(A, 's_sub_u32 s43, s2, 208\n    s_lshr_b32 s43, s43, 3')
    A('''
    s_load_dwordx2 s[4:5], s[0:1], 16
    s_load_dwordx2 s[6:7], s[0:1], 56
    s_sub_u32 s24, s2, 240
    s_movk_i32 s26, 1280
    s_mov_b32 s27, 0
    v_and_b32 v1, 63, v0
    v_and_b32 v2, 31, v1
    v_lshrrev_b32 v3, 5, v1
    s_and_b32 s30, s28, 3
    s_lshr_b32 s29, s28, 2
    s_waitcnt lgkmcnt(0)
    ''')
    srd(A, 20, 10, WS_END)
    g1_dma_b_setup(A)
    A('''
    v_and_b32 v5, 15, v1
    v_lshrrev_b32 v5, 2, v5
    v_and_b32 v6, 3, v1
    v_lshlrev_b32 v7, 3, v3
    v_add_u32 v7, v7, v5
    v_lshlrev_b32 v7, 8, v7
    v_xor_b32 v8, s30, v5
    v_lshlrev_b32 v8, 6, v8
    v_add_u32 v7, v7, v8
    v_lshrrev_b32 v8, 4, v1
    v_and_b32 v8, 1, v8
    v_lshlrev_b32 v8, 5, v8
    v_add_u32 v7, v7, v8
    v_lshlrev_b32 v6, 3, v6
    v_add_u32 v7, v7, v6
    s_lshl_b32 s33, s29, 13
    v_add_u32 v7, s33, v7
    s_lshl_b32 s35, s28, 11
    s_lshl_b32 s33, s30, 1
    v_lshrrev_b32 v9, 4, v1
    v_and_b32 v9, 1, v9
    v_add_u32 v9, s33, v9
    s_mov_b32 s33, 45056
    v_mul_lo_u32 v9, v9, s33
    v_lshlrev_b32 v10, 8, v3
    v_add_u32 v9, v9, v10
    v_and_b32 v10, 15, v1
    v_lshlrev_b32 v10, 4, v10
    v_add_u32 v9, v9, v10
    s_lshl_b32 s33, s29, 10
    v_add_u32 v9, s33, v9
    s_mov_b32 s18, 983040
    s_mov_b32 s19, 0x00020000
    ''')
    def tile_scalars(q):
        A(f'''
        s_add_u32 s40, s24, {16*q}
        s_mul_i32 s41, s40, 52429
        s_lshr_b32 s41, s41, 18
        s_mul_i32 s42, s41, 5
        s_sub_u32 s42, s40, s42
        ''')
    for q in range(7):
        if q == 6:
            A('s_cmp_ge_u32 s24, 14')
            A('s_cbranch_scc1 k2_wt_issued')
        tile_scalars(q)
        A(f'''
        s_cmp_lt_u32 s41, 10
        s_cselect_b32 s16, s4, s6
        s_cselect_b32 s17, s5, s7
        s_cselect_b32 s43, 0, 10
        s_and_b32 s17, s17, 0xffff
        s_sub_u32 s43, s41, s43
        s_mul_i32 s43, s43, {64*1280}
        s_lshl_b32 s44, s42, 8
        s_add_u32 s43, s43, s44
        s_add_u32 m0, s35, {16384*q}
        s_nop 0
        buffer_load_dwordx4 v{VOB}, s[16:19], s43 offen lds
        buffer_load_dwordx4 v{VOB+1}, s[16:19], s43 offen offset:1024 lds
        ''')
    A.label('k2_wt_issued')
    A('''
    s_waitcnt vmcnt(0)
    s_barrier
    ''')
    for q in range(7):
        if q == 6:
            A('s_cmp_ge_u32 s24, 14')
            A('s_cbranch_scc1 k2_wt_done')
        tile_scalars(q)
        base = 16 + 8 * q
        A(f'v_add_u32 v11, {16384*q}, v7')
        for kk in range(2):
            A(f'ds_read_b64_tr_b16 {vr(base+4*kk,2)}, v11 offset:{kk*4096}')
            A(f'ds_read_b64_tr_b16 {vr(base+4*kk+2,2)}, v11 offset:{kk*4096+1024}')
        A(f'''
        s_mul_i32 s43, s42, {8*45056}
        s_lshl_b32 s44, s41, 11
        s_add_u32 s43, s43, s44
        s_add_u32 s43, s43, {WT}
        s_waitcnt lgkmcnt(0)
        buffer_store_dwordx4 {vr(base)}, v9, s[20:23], s43 offen
        buffer_store_dwordx4 {vr(base+4)}, v9, s[20:23], s43 offen offset:512
        ''')
    A.label('k2_wt_done')
    A.st.flush(8, 1)
    A.st.n = 1
    A('s_endpgm')

K3_STAGE = 16384
K3_NST = 6
K3_LDS = 98304

def xcd_decode_8x4(A):
    A("""
    s_and_b32 s33, s2, 7
    s_lshr_b32 s26, s2, 3
    s_lshr_b32 s24, s33, 1
    s_lshl_b32 s24, s24, 3
    s_lshr_b32 s25, s26, 2
    s_add_u32 s24, s24, s25
    s_and_b32 s25, s33, 1
    s_lshl_b32 s25, s25, 2
    s_and_b32 s34, s26, 3
    s_add_u32 s25, s25, s34
    """)

def dma_voffs(A, dst, n, rows_per_wave, stride, base_row_sreg, extra):
    for i in range(n):
        A(f"""
        s_mul_i32 s33, s28, {rows_per_wave}
        s_add_u32 s33, s33, {4*i}
        v_add_u32 v4, s33, v3
        v_and_b32 v5, 15, v4
        v_xor_b32 v5, v5, v2
        v_lshlrev_b32 v5, 4, v5
        v_add_u32 v4, s{base_row_sreg}, v4
        s_movk_i32 s34, {stride}
        v_mul_lo_u32 v4, v4, s34
        v_add_u32 v4, v4, v5
        v_add_u32 v{dst+i}, {extra - 1024*(i & 3)}, v4
        """)

def rr(kb, off, n=4):
    k, b = kb
    return f'{k}[{b+off}:{b+off+n-1}]'

def gen_k3(A):
    A.label('k3_kernel')
    A.st()
    A.reset_counters()
    A("""
    s_cmp_ge_u32 s2, 256
    s_cbranch_scc1 k3_done
    s_load_dwordx4 s[4:7], s[0:1], 40
    s_load_dwordx2 s[10:11], s[0:1], 80
    v_lshrrev_b32 v2, 6, v0
    v_and_b32 v1, 63, v0
    v_readfirstlane_b32 s28, v2
    v_and_b32 v2, 15, v1
    v_lshrrev_b32 v3, 4, v1
    """)
    xcd_decode_8x4(A)
    A("""
    s_and_b32 s29, s28, 3
    s_lshr_b32 s30, s28, 2
    """)
    NST = K3_NST; NR = 6
    VDA, VZ, VRD = 120, 122, 125
    ZR = lambda r: 48 + 12 * r
    AFR = lambda b: ('a', 48 + 16 * b)
    A('s_lshl_b32 s40, s24, 6')
    dma_voffs(A, VDA, 2, 8, 4096, 40, 0)
    A(f"""
    s_mul_i32 s33, s25, 6
    s_mul_i32 s34, s30, 3
    s_add_u32 s33, s33, s34
    s_lshl_b32 s33, s33, 16
    s_lshl_b32 s34, s29, 10
    s_add_u32 s33, s33, s34
    s_add_u32 s33, s33, {Z2NT}
    v_lshlrev_b32 v4, 4, v1
    v_add_u32 v{VZ}, s33, v4
    """)
    for j in range(1, 3):
        A(f'v_add_u32 v{VZ+j}, {65536*j}, v{VZ}')
    A(f"""
    s_lshl_b32 s42, s28, 11
    s_and_b32 s33, s2, 7
    s_lshl_b32 s49, s33, 1
    s_add_u32 s49, s49, s26
    s_waitcnt lgkmcnt(0)
    """)
    srd(A, 12, 4, 2048 * 4096)
    srd(A, 20, 10, WS_END)
    def dma(c):
        st = c % NST
        A(f's_add_u32 s44, s49, {c}')
        A(f's_and_b32 s44, s44, 15')
        A(f's_lshl_b32 s44, s44, 8')
        A(f's_add_u32 m0, s42, {st*K3_STAGE}')
        for i in range(2):
            A.vm(('d', c), f'buffer_load_dwordx4 v{VDA+i}, s[12:15], s44 offen offset:{1024*i} lds')
    def zloads(c):
        A(f's_add_u32 s45, s49, {c}')
        A(f's_and_b32 s45, s45, 15')
        A(f's_lshl_b32 s45, s45, 12')
        for j in range(3):
            A.vm(('z', c), f'buffer_load_dwordx4 {vr(ZR(c % NR)+4*j)}, v{VZ+j}, s[20:23], s45 offen')
    def read_list(c):
        st = c % NST; fb = AFR(c & 1)
        return [f'ds_read_b128 {rr(fb, 4*i)}, v{VRD + st//3} offset:{(st%3)*K3_STAGE + 4096*i}' for i in range(4)]
    K3UP = int(os.environ.get('K3UP', '2'))
    for c in range(K3UP):
        dma(c)
        zloads(c)
    srd(A, 16, 6, 4096)
    A(f"""
    s_lshl_b32 s33, s29, 2
    v_add_u32 v4, s33, v3
    v_xor_b32 v4, v4, v2
    v_lshlrev_b32 v4, 4, v4
    v_lshlrev_b32 v5, 8, v2
    v_add_u32 v{VRD}, v4, v5
    v_add_u32 v{VRD+1}, {3*K3_STAGE}, v{VRD}
    """)
    A(f"""
    s_and_b32 s53, s2, 7
    s_lshr_b32 s53, s53, 1
    s_lshl_b32 s53, s53, 5
    s_add_u32 s53, s53, s26
    s_lshl_b32 s33, s53, 4
    v_add_u32 v4, s33, v2
    s_movk_i32 s34, 1280
    v_mul_lo_u32 v5, v4, s34
    v_lshlrev_b32 v6, 4, v3
    v_add_u32 v5, v5, v6
    s_and_b32 s35, s2, 1
    s_lshl_b32 s35, s35, 4
    s_lshl_b32 s34, s28, 1
    s_add_u32 s35, s35, s34
    s_mul_i32 s36, s35, 40
    s_add_u32 s37, s36, {PQ}
    v_lshlrev_b32 v7, 6, v2
    v_add_u32 v7, v7, v6
    s_lshl_b32 s38, s35, 11
    s_add_u32 s38, s38, {KVT}
    s_lshl_b32 s39, s35, 6
    s_add_u32 s39, s39, {ZP}
    """)
    OF = 16
    def o_loads():
        for q in range(2):
            b = OF + 16 * q
            A.vm('o', f'buffer_load_dwordx4 {vr(b)}, v5, s[20:23], s37 offen offset:{40*q}')
            A.vm('o', f'buffer_load_dwordx4 {vr(b+4)}, v7, s[20:23], s38 offen offset:{2048*q}')
            A.vm('o', f'buffer_load_dwordx4 {vr(b+8)}, v7, s[20:23], s38 offen offset:{2048*q+1024}')
            A.vm('o', f'buffer_load_dwordx4 {vr(b+12)}, v6, s[20:23], s39 offen offset:{64*q}')
    OD = 80
    def o_mfma():
        A.wait_vm('o')
        for q in range(2):
            b = OF + 16 * q; d = OD + 12 * q
            A(f'v_mfma_f32_16x16x32_bf16 a[{d}:{d+3}], {vr(b+4)}, {vr(b)}, 0')
            A(f'v_mfma_f32_16x16x32_bf16 a[{d+4}:{d+7}], {vr(b+8)}, {vr(b)}, 0')
            A(f'v_mfma_f32_16x16x32_bf16 a[{d+8}:{d+11}], {vr(b+12)}, {vr(b)}, 0')
    A(f"""
    s_mul_i32 s36, s53, 45056
    s_add_u32 s36, s36, {OH}
    s_mul_i32 s33, s35, 20
    v_lshlrev_b32 v8, 2, v3
    v_add_u32 v8, s33, v8
    v_lshlrev_b32 v9, 4, v2
    v_cmp_eq_u32 s[50:51], 0, v3
    v_mov_b32 v127, 0x7ffffff0
    """)
    def coloff(dst, col):
        A(f"""
        v_lshrrev_b32 v10, 5, v{col}
        v_lshlrev_b32 v10, 10, v10
        v_bfe_u32 v11, v{col}, 3, 2
        v_lshl_add_u32 v10, v11, 8, v10
        v_bfe_u32 v11, v{col}, 2, 1
        v_lshl_add_u32 v10, v11, 3, v10
        v_add_u32 v{dst}, v10, v9
        """)
    def o_epi(q):
        D = 32; t = 16 + 4 * q
        for k in range(9):
            A(f'v_accvgpr_read_b32 v{D+k}, a{OD+12*q+k}')
        A(f'v_add_u32 v12, {20*q}, v8')
        coloff(42, 12)
        A(f'v_add_u32 v12, 16, v12')
        coloff(43, 12)
        A(f'v_cndmask_b32 v43, v127, v43, s[50:51]')
        A(f'v_cvt_pk_bf16_f32 v{t}, v{D+8}, v{D+8}')
        A(f'v_lshlrev_b32 v{D+8}, 16, v{t}')
        A(f'v_add_f32 v{D+8}, {f32(1e-6)}, v{D+8}')
        A(f'v_cvt_pk_bf16_f32 v{t}, v{D+8}, v{D+8}')
        A(f'v_lshlrev_b32 v{D+8}, 16, v{t}')
        A(f'v_rcp_f32 v{D+8}, v{D+8}')
        for k in range(0, 8, 2):
            rnd_pair(A, t, D + k, D + k + 1)
        for k in range(8):
            A(f'v_mul_f32 v{D+k}, v{D+k}, v{D+8}')
        for k in range(4):
            A(f'v_cvt_pk_bf16_f32 v{t+k}, v{D+2*k}, v{D+2*k+1}')
        A.vm('os', f'buffer_store_dwordx2 {vr(t,2)}, v42, s[20:23], s36 offen')
        A.vm('os', f'buffer_store_dwordx2 {vr(t+2,2)}, v43, s[20:23], s36 offen')
    Z1R = 24; BS = 30
    A(f"""
    s_lshl_b32 s34, s29, 4
    s_add_u32 s33, s40, s34
    v_add_u32 v13, s33, v2
    s_movk_i32 s34, 1536
    v_mul_lo_u32 v14, v13, s34
    v_lshlrev_b32 v11, 3, v3
    v_add_u32 v14, v14, v11
    s_mul_i32 s52, s25, 192
    s_mul_i32 s33, s30, 96
    s_add_u32 s52, s52, s33
    s_add_u32 s47, s52, {Z1}
    v_lshlrev_b32 v13, 1, v13
    v_lshrrev_b32 v10, 1, v3
    v_lshlrev_b32 v10, 8, v10
    v_and_b32 v11, 1, v3
    v_lshl_add_u32 v10, v11, 3, v10
    v_add_u32 v15, v10, v9
    s_lshl_b32 s33, s24, 2
    s_add_u32 s33, s33, s29
    s_mul_i32 s33, s33, 44
    s_mul_i32 s34, s25, 3
    s_add_u32 s33, s33, s34
    s_add_u32 s33, s33, 20
    s_lshl_b32 s48, s33, 10
    s_mul_i32 s33, s30, 1536
    s_add_u32 s48, s48, s33
    s_add_u32 s48, s48, {OH}
    """)
    NC = 16
    A.st()
    A.st()
    A.wait_vm(('d', 0))
    A('s_barrier')
    A.st()
    for r in read_list(0):
        A.ld('fr', r)
    nxt = K3UP
    for c in range(NC):
        fa = AFR(c & 1); zb = ZR(c % NR)
        A.wait_ld_all()
        RL = []
        if c < NC - 1:
            A.wait_vm(('d', c + 1))
            A('s_barrier')
            RL = read_list(c + 1)
        A.wait_vm(('z', c))
        if c in (3, 7, 11):
            A.st()
        todo = []
        while nxt < NC and nxt <= c + NR - 1 and len(todo) < 2:
            todo.append(nxt); nxt += 1
        n = 0
        for i in range(4):
            for j in range(3):
                acc = (j * 4 + i) * 4
                cin = '0' if c == 0 else f'a[{acc}:{acc+3}]'
                A(f'v_mfma_f32_16x16x32_bf16 a[{acc}:{acc+3}], {vr(zb+4*j)}, {rr(fa,4*i)}, {cin}')
                n += 1
                if n % 2 == 0 and RL:
                    A.ld('fr', RL.pop(0))
                for ti, cc in enumerate(todo):
                    if n == 1 + 6 * ti:
                        dma(cc)
                    if n == 3 + 6 * ti:
                        zloads(cc)
        assert not RL
        if c == 10:
            o_loads()
        if c == 12:
            o_mfma()
        if c == 13:
            o_epi(0)
        if c == 14:
            o_epi(1)
            for j in range(3):
                A.vm('z1', f'buffer_load_dwordx2 {vr(Z1R+2*j,2)}, v14, s[20:23], s47 offen offset:{32*j}')
            A.vm('z1', f'buffer_load_ushort v{BS}, v13, s[16:19], 0 offen')
    A.st()
    A(f"""
    v_lshlrev_b32 v4, 4, v1
    s_mul_i32 s33, s28, 12288
    v_add_u32 v5, s33, v4
    s_mul_i32 s33, s30, 49152
    s_lshl_b32 s34, s29, 10
    s_add_u32 s33, s33, s34
    v_add_u32 v6, s33, v4
    s_barrier
    """)
    for tl in range(12):
        A(f'ds_write_b128 v5, a[{4*tl}:{4*tl+3}] offset:{1024*tl}')
    A('s_waitcnt lgkmcnt(0)')
    A('s_barrier')
    RB = 48
    for src in range(4):
        for j in range(3):
            A(f'ds_read_b128 {vr(RB+12*src+4*j)}, v6 offset:{src*12288 + 4096*j}')
    A('s_waitcnt lgkmcnt(0)')
    for src in range(1, 4):
        for k in range(12):
            A(f'v_add_f32 v{RB+k}, v{RB+k}, v{RB+12*src+k}')
    A.wait_vm('z1')
    A(f'v_lshlrev_b32 v{BS}, 16, v{BS}')
    TP = 100
    for k in range(0, 12, 2):
        rnd_pair(A, TP + k // 2, RB + k, RB + k + 1)
    for k in range(12):
        A(f'v_add_f32 v{RB+k}, v{RB+k}, v{BS}')
    for k in range(0, 12, 2):
        rnd_pair(A, TP + k // 2, RB + k, RB + k + 1)
    for k in range(6):
        A(f'v_lshlrev_b32 v{TP+2*k}, 16, v{Z1R+k}')
        A(f'v_and_b32 v{TP+2*k+1}, 0xffff0000, v{Z1R+k}')
    for k in range(12):
        A(f'v_mul_f32 v{RB+k}, v{RB+k}, v{TP+k}')
    for k in range(6):
        A(f'v_cvt_pk_bf16_f32 v{Z1R+k}, v{RB+2*k}, v{RB+2*k+1}')
    for j in range(3):
        A(f'buffer_store_dwordx2 {vr(Z1R+2*j,2)}, v15, s[20:23], s48 offen offset:{512*j}')
    A.st.flush(8, 2)
    A.label('k3_done')
    A('s_endpgm')

K4_LDS = 163840
def k4_stage(s):
    return ('a', 80 + 36 * s) if s < 1 else ('v', 20 + 36 * (s - 1))

def gen_k4(A):
    A.label('k4_kernel')
    A.st()
    A.reset_counters()
    A("""
    s_cmp_ge_u32 s2, 256
    s_cbranch_scc1 k4_done
    s_load_dwordx2 s[4:5], s[0:1], 0
    s_load_dwordx2 s[6:7], s[0:1], 64
    s_load_dwordx2 s[10:11], s[0:1], 80
    v_lshrrev_b32 v2, 6, v0
    v_and_b32 v1, 63, v0
    v_readfirstlane_b32 s28, v2
    v_and_b32 v2, 15, v1
    v_lshrrev_b32 v3, 4, v1
    """)
    xcd_decode_8x4(A)
    VW, VO = 5, 10
    A(f"""
    s_and_b32 s29, s28, 3
    s_lshr_b32 s30, s28, 2
    v_lshlrev_b32 v4, 4, v1
    s_lshl_b32 s34, s29, 10
    s_mul_i32 s33, s30, 20480
    s_add_u32 s34, s34, s33
    s_mul_i32 s33, s25, {5*45056}
    s_add_u32 s33, s33, s34
    s_add_u32 s33, s33, {WT}
    v_add_u32 v{VW}, s33, v4
    s_mul_i32 s33, s24, {4*45056}
    s_add_u32 s33, s33, s34
    s_add_u32 s33, s33, {OH}
    v_add_u32 v{VO}, s33, v4
    """)
    for j in range(1, 5):
        A(f'v_add_u32 v{VW+j}, {45056*j}, v{VW}')
    for i in range(1, 4):
        A(f'v_add_u32 v{VO+i}, {45056*i}, v{VO}')
    A('s_waitcnt lgkmcnt(0)')
    srd(A, 20, 10, WS_END)
    NS = 4
    def loads(step):
        sb = k4_stage(step % NS)
        A(f's_mov_b32 s44, {4096*step}')
        for j in range(5):
            A.vm(('m', step), f'buffer_load_dwordx4 {rr(sb, 4*j)}, v{VW+j}, s[20:23], s44 offen')
        for i in range(4):
            A.vm(('m', step), f'buffer_load_dwordx4 {rr(sb, 20+4*i)}, v{VO+i}, s[20:23], s44 offen')
    A.st()
    for s_ in range(NS):
        loads(s_)
    srd(A, 12, 4, 2048 * 1280)
    srd(A, 16, 6, 2048 * 1280)
    A(f"""
    s_lshl_b32 s33, s24, 6
    s_lshl_b32 s34, s29, 4
    s_add_u32 s33, s33, s34
    v_add_u32 v14, s33, v2
    s_movk_i32 s34, 1280
    v_mul_lo_u32 v14, v14, s34
    v_lshlrev_b32 v15, 3, v3
    v_add_u32 v14, v14, v15
    s_mul_i32 s46, s25, 160
    s_mul_i32 s33, s30, 96
    s_add_u32 s46, s46, s33
    """)
    nxt = NS
    for step in range(6):
        sb = k4_stage(step % NS)
        if step == 5:
            A('s_cmp_eq_u32 s30, 0')
            A('s_cbranch_scc1 k4_skip5')
        A.wait_vm(('m', step))
        if step in (0, 2, 4):
            A.st()
        n = 0
        for i in range(4):
            for j in range(5):
                acc = (j * 4 + i) * 4
                cin = '0' if step == 0 else f'a[{acc}:{acc+3}]'
                A(f'v_mfma_f32_16x16x32_bf16 a[{acc}:{acc+3}], {rr(sb,4*j)}, {rr(sb,20+4*i)}, {cin}')
                n += 1
                if n == 1 and nxt < 6 and nxt <= step + NS - 1:
                    loads(nxt); nxt += 1
    A.label('k4_skip5')
    A('s_waitcnt vmcnt(0)')
    A.reset_counters()
    A.st()
    XR = 116
    for j in range(3):
        A.vm('x', f'buffer_load_dwordx2 {vr(XR+2*j,2)}, v14, s[12:15], s46 offen offset:{32*j}')
    A(f"""
    v_lshlrev_b32 v4, 4, v1
    s_mul_i32 s33, s28, 20480
    v_add_u32 v5, s33, v4
    s_lshl_b32 s33, s29, 10
    s_mul_i32 s34, s30, 12288
    s_add_u32 s33, s33, s34
    v_add_u32 v6, s33, v4
    v_add_u32 v7, 40960, v6
    v_add_u32 v8, 81920, v6
    v_add_u32 v9, 122880, v6
    s_nop 4
    """)
    for tl in range(20):
        A(f'ds_write_b128 v5, a[{4*tl}:{4*tl+3}] offset:{1024*tl}')
    A('s_waitcnt lgkmcnt(0)')
    A('s_barrier')
    RB = 20
    for src in range(8):
        for j in range(3):
            A(f'ds_read_b128 {vr(RB+12*src+4*j)}, v{6 + src//2} offset:{(src&1)*20480 + 4096*j}')
    A('s_waitcnt lgkmcnt(0)')
    RA = RB; RBB = RB + 48
    for base in (RA, RBB):
        for src in range(1, 4):
            for k in range(12):
                A(f'v_add_f32 v{base+k}, v{base+k}, v{base+12*src+k}')
    A.st()
    A.wait_vm('x')
    TP = 32
    for k in range(0, 12, 2):
        rnd_pair(A, TP + k // 2, RA + k, RA + k + 1)
    for k in range(0, 12, 2):
        rnd_pair(A, TP + k // 2, RBB + k, RBB + k + 1)
    for k in range(6):
        A(f'v_lshlrev_b32 v{TP+2*k}, 16, v{XR+k}')
        A(f'v_and_b32 v{TP+2*k+1}, 0xffff0000, v{XR+k}')
    for k in range(12):
        A(f'v_add_f32 v{RA+k}, v{TP+k}, v{RA+k}')
    for k in range(0, 12, 2):
        rnd_pair(A, TP + k // 2, RA + k, RA + k + 1)
    for k in range(12):
        A(f'v_add_f32 v{RA+k}, v{RA+k}, v{RBB+k}')
    for k in range(6):
        A(f'v_cvt_pk_bf16_f32 v{XR+k}, v{RA+2*k}, v{RA+2*k+1}')
    for j in range(2):
        A(f'buffer_store_dwordx2 {vr(XR+2*j,2)}, v14, s[16:19], s46 offen offset:{32*j}')
    A('s_cmp_lg_u32 s30, 0')
    A('s_cbranch_scc1 k4_end')
    A(f'buffer_store_dwordx2 {vr(XR+4,2)}, v14, s[16:19], s46 offen offset:64')
    A.label('k4_end')
    A.st.flush(8, 3)
    A.label('k4_done')
    A('s_endpgm')

def kd(name, vgpr, accum, sgpr=100):
    return f'''
.amdhsa_kernel {name}
  .amdhsa_next_free_vgpr {vgpr}
  .amdhsa_next_free_sgpr {sgpr}
  .amdhsa_accum_offset {accum}
  .amdhsa_group_segment_fixed_size 0
  .amdhsa_kernarg_size 88
  .amdhsa_user_sgpr_count 2
  .amdhsa_user_sgpr_kernarg_segment_ptr 1
  .amdhsa_system_sgpr_workgroup_id_x 1
.end_amdhsa_kernel
'''

def main():
    hdr = open(f'cdna_kernels/{NAME}.s.ref').read().split('\n')
    hdr = [l for l in hdr if l.startswith(';') and '@launch' not in l]
    out = '\n'.join(hdr) + '\n'
    out += f'; @launch kernel=k1_kernel grid=(256,1,1) block=(512,1,1) lds={G1_LDS}\n'
    out += f'; @launch kernel=k2_kernel grid=(256,1,1) block=(512,1,1) lds={G1_LDS}\n'
    out += f'; @launch kernel=k3_kernel grid=(256,1,1) block=(512,1,1) lds={K3_LDS}\n'
    out += f'; @launch kernel=k4_kernel grid=(256,1,1) block=(512,1,1) lds={K4_LDS}\n'
    out += '.amdgcn_target "amdgcn-amd-amdhsa--gfx950"\n.text\n'
    for nm, fn in (('k1_kernel', gen_k1), ('k2_kernel', gen_k2), ('k3_kernel', gen_k3), ('k4_kernel', gen_k4)):
        A = Asm()
        A.st = Stamps(A, nm[:2] in STAMP)
        A.flags = {'ldf': os.environ.get('LDF', ''), 'ldi': os.environ.get('LDI', ''), 'st': os.environ.get('STF', '')}
        fn(A)
        out += f'.globl {nm}\n.p2align 8\n.type {nm},@function\n'
        out += A.render()
    out += '.section .rodata,"a"\n.p2align 6\n'
    out += kd('k1_kernel', 256, 256)
    out += kd('k2_kernel', 256, 256)
    out += kd('k3_kernel', 256, 128)
    out += kd('k4_kernel', 256, 128)
    open(os.environ.get('OUT', f'cdna_kernels/{NAME}.s'), 'w').write(out)

if __name__ == '__main__':
    main()
```

```python
import sys, struct
sys.path.insert(0, 'gen')
from dsl import Asm

NAME = 'parallel_sum__linear_attn_block__mixer_gmlp__prompt'

T1   = 0
PQ   = 8388608
Z1   = PQ + 2621440
Z2NT = Z1 + 3145728
KVT  = Z2NT + 3145728
ZP   = KVT + 65536
WT   = KVT + 131072
OH   = 19398656
STATS = OH + 5767168
WS_END = STATS + 16384

def f32(x):
    return '0x%08x' % struct.unpack('<I', struct.pack('<f', x))[0]

LOG2E = 1.4426950408889634
KBETA = 0.7978845608028654
KKAPPA = 0.044715

def srd(A, d, b, nbytes):
    A(f's_mov_b32 s{d}, s{b}')
    A(f's_and_b32 s{d+1}, s{b+1}, 0xffff')
    A(f's_mov_b32 s{d+2}, {nbytes}')
    A(f's_mov_b32 s{d+3}, 0x00020000')

import os
STAMP = os.environ.get('STAMP', '')
STAMP_BASE = 32 << 20
class Stamps:
    def __init__(self, A, on):
        self.A = A; self.on = on; self.n = 0
    def __call__(self):
        if not self.on: return
        A = self.A
        A(f's_memtime s[{64+2*self.n}:{65+2*self.n}]')
        if self.n == 0:
            A('s_memrealtime s[96:97]')
        A('s_waitcnt lgkmcnt(0)')
        A.ldq = []
        self.n += 1
    def flush(self, nwaves, kidx):
        if not self.on: return
        A = self.A
        A('s_waitcnt vmcnt(0)')
        A('s_memrealtime s[98:99]')
        self()
        A(f'''
        s_mov_b32 s60, s10
        s_and_b32 s61, s11, 0xffff
        s_mov_b32 s62, {64<<20}
        s_mov_b32 s63, 0x00020000
        s_lshl_b32 s33, s2, 3
        s_add_u32 s33, s33, s28
        s_lshl_b32 s33, s33, 7
        s_add_u32 s33, s33, {STAMP_BASE + (kidx<<20)}
        v_mov_b32 v4, 0
        ''')
        for i in range(self.n):
            A(f'v_mov_b32 v6, s{64+2*i}')
            A(f'v_mov_b32 v7, s{65+2*i}')
            A(f'buffer_store_dwordx2 v[6:7], v4, s[60:63], s33 offen offset:{8*i}')
            A('s_nop 1')
        A('s_getreg_b32 s94, hwreg(HW_REG_XCC_ID)')
        A('s_getreg_b32 s95, hwreg(HW_REG_HW_ID)')
        A('v_mov_b32 v6, s94')
        A('v_mov_b32 v7, s95')
        A(f'buffer_store_dwordx2 v[6:7], v4, s[60:63], s33 offen offset:104')
        A('s_nop 1')
        for i in range(2):
            A(f'v_mov_b32 v6, s{96+2*i}')
            A(f'v_mov_b32 v7, s{97+2*i}')
            A(f'buffer_store_dwordx2 v[6:7], v4, s[60:63], s33 offen offset:{112+8*i}')
            A('s_nop 1')

def rnd_pair(A, p, a, b):
    A(f'v_cvt_pk_bf16_f32 v{p}, v{a}, v{b}')
    A(f'v_lshlrev_b32 v{a}, 16, v{p}')
    A(f'v_and_b32 v{b}, 0xffff0000, v{p}')

G1_STAGE = 32768
G1_MB = 4 * G1_STAGE
G1_RI = G1_MB + 512
G1_CP = G1_RI + 512
G1_RP = G1_CP + 1024
G1_LDS = G1_RP + 4096

ACC = 32
FX = lambda b, ks, i: 64 + 48 * b + 12 * ks + 4 * i
FW = lambda b, ks: 64 + 48 * b + 12 * ks + 8
VA = lambda s, ks: 160 + 4 * s + ks
VB = lambda s, ks: 168 + 4 * s + ks
VOA = 176; VOB = 178
SM = 180
ONES = 200
MBR = 202
RS = 206
CS = 210
T0 = 64

def vr(b, n=4):
    return f'v[{b}:{b+n-1}]'

def g1_dma_setup(A):
    A("""
    v_and_b32 v1, 63, v0
    v_lshrrev_b32 v5, 3, v1
    s_lshl_b32 s33, s24, 7
    s_lshl_b32 s34, s28, 4
    s_add_u32 s33, s33, s34
    v_add_u32 v5, s33, v5
    s_movk_i32 s34, 1280
    v_mul_lo_u32 v5, v5, s34
    v_lshrrev_b32 v6, 4, v1
    v_and_b32 v7, 7, v1
    v_xor_b32 v8, v7, v6
    v_lshlrev_b32 v8, 4, v8
    """)
    A(f'v_add_u32 v{VOA}, v5, v8')
    A("""
    v_add_u32 v6, 4, v6
    v_xor_b32 v8, v7, v6
    v_lshlrev_b32 v8, 4, v8
    v_add_u32 v8, v5, v8
    """)
    A(f'v_add_u32 v{VOA+1}, {8*1280-1024}, v8')
    g1_dma_b_setup(A)

def g1_lane_setup(A):
    A("""
    v_and_b32 v2, 31, v1
    v_lshrrev_b32 v3, 5, v1
    v_lshrrev_b32 v4, 1, v1
    v_and_b32 v4, 7, v4
    v_xor_b32 v4, v3, v4
    v_lshlrev_b32 v4, 4, v4
    v_lshlrev_b32 v5, 7, v2
    v_add_u32 v4, v4, v5
    s_lshl_b32 s33, s29, 13
    v_add_u32 v4, s33, v4
    s_xor_b32 s31, s30, s29
    s_lshl_b32 s33, s31, 5
    v_xor_b32 v4, s33, v4
    """)
    for ks in range(4):
        A(f'v_xor_b32 v{VA(0,ks)}, {ks<<5}, v4')
        A(f'v_add_u32 v{VA(1,ks)}, 0x10000, v{VA(0,ks)}')
    A("""
    v_and_b32 v5, 15, v1
    v_lshrrev_b32 v5, 2, v5
    v_and_b32 v6, 3, v1
    v_lshlrev_b32 v7, 3, v3
    v_add_u32 v7, v7, v5
    v_lshlrev_b32 v7, 8, v7
    v_xor_b32 v8, s30, v5
    v_lshlrev_b32 v8, 6, v8
    v_add_u32 v7, v7, v8
    v_lshrrev_b32 v8, 4, v1
    v_and_b32 v8, 1, v8
    v_lshlrev_b32 v8, 5, v8
    v_add_u32 v7, v7, v8
    v_lshlrev_b32 v6, 3, v6
    v_add_u32 v7, v7, v6
    s_lshl_b32 s33, s31, 12
    s_add_u32 s33, s33, 0x4000
    """)
    for ks in range(4):
        A(f's_xor_b32 s34, s33, {ks<<12}')
        A(f'v_add_u32 v{VB(0,ks)}, s34, v7')
        A(f'v_add_u32 v{VB(1,ks)}, 0x10000, v{VB(0,ks)}')

def g1_dma_b_setup(A):
    A("""
    v_lshrrev_b32 v6, 4, v1
    s_lshl_b32 s33, s28, 3
    v_add_u32 v5, s33, v6
    v_mul_lo_u32 v5, v5, s26
    v_and_b32 v7, 15, v1
    v_lshrrev_b32 v7, 2, v7
    v_xor_b32 v7, v7, v6
    v_lshlrev_b32 v7, 2, v7
    v_and_b32 v8, 3, v1
    v_add_u32 v7, v7, v8
    v_lshlrev_b32 v7, 4, v7
    v_add_u32 v5, v5, v7
    """)
    A(f'v_add_u32 v{VOB}, s27, v5')
    A("""
    s_lshl_b32 s33, s26, 2
    s_sub_u32 s33, s33, 1024
    """)
    A(f'v_add_u32 v{VOB+1}, s33, v{VOB}')

def g1_dma(A, c, half=None):
    st = c % 4
    if half in (None, 0):
        A(f's_add_u32 s48, s32, {c}')
        A(f's_sub_u32 s49, s48, 10')
        A(f's_cmp_ge_u32 s48, 10')
        A(f's_cselect_b32 s48, s49, s48')
        A(f's_add_u32 m0, s35, {st*G1_STAGE}')
        A(f's_lshl_b32 s36, s48, 7')
        A.vm(('dma', c), f'buffer_load_dwordx4 v{VOA}, s[12:15], s36 offen lds')
        A.vm(('dma', c), f'buffer_load_dwordx4 v{VOA+1}, s[12:15], s36 offen offset:1024 lds')
    if half in (None, 1):
        A(f's_add_u32 m0, s35, {st*G1_STAGE+16384}')
        A(f's_mul_i32 s37, s38, s48')
        A.vm(('dma', c), f'buffer_load_dwordx4 v{VOB}, s[16:19], s37 offen lds')
        A.vm(('dma', c), f'buffer_load_dwordx4 v{VOB+1}, s[16:19], s37 offen offset:1024 lds')

def g1_read_list(c):
    st = c % 4; s = st >> 1; o = (st & 1) * G1_STAGE
    b = c & 1
    L = []
    for ks in range(4):
        L.append(f'ds_read_b128 {vr(FX(b,ks,0))}, v{VA(s,ks)} offset:{o}')
        L.append(f'ds_read_b64_tr_b16 {vr(FW(b,ks),2)}, v{VB(s,ks)} offset:{o}')
        L.append(f'ds_read_b64_tr_b16 {vr(FW(b,ks)+2,2)}, v{VB(s,ks)} offset:{o + 1024}')
        L.append(f'ds_read_b128 {vr(FX(b,ks,1))}, v{VA(s,ks)} offset:{o + 4096}')
    return L

def g1_touch(A, name, nb):
    if not os.environ.get('G1TOUCH'):
        return
    A(f"""
    s_cmp_lt_u32 s28, 3
    s_cbranch_scc0 {name}_tb
    v_and_b32 v4, 15, v1
    s_lshl_b32 s33, s24, 7
    s_lshl_b32 s34, s40, 4
    s_add_u32 s33, s33, s34
    v_add_u32 v4, s33, v4
    s_movk_i32 s34, 1280
    v_mul_lo_u32 v4, v4, s34
    v_lshrrev_b32 v5, 4, v1
    v_lshlrev_b32 v5, 7, v5
    v_add_u32 v4, v4, v5
    s_lshl_b32 s33, s28, 9
    buffer_load_dword v8, v4, s[12:15], s33 offen
    """)
    for q in range(1, nb):
        A('buffer_load_dword v8, v4, s[12:15], s33 offen')
    A(f's_branch {name}_td')
    A.label(f'{name}_tb')
    A(f"""
    v_lshrrev_b32 v4, 1, v1
    s_lshl_b32 s33, s28, 5
    s_mul_i32 s34, s41, {160*nb}
    s_add_u32 s33, s33, s34
    s_sub_u32 s33, s33, 96
    v_add_u32 v4, s33, v4
    v_mul_lo_u32 v4, v4, s26
    v_and_b32 v5, 1, v1
    v_lshlrev_b32 v5, 7, v5
    v_add_u32 v4, v4, v5
    s_mul_i32 s33, s26, 160
    s_add_u32 s33, s33, s27
    buffer_load_dword v8, v4, s[16:19], s27 offen
    """)
    for q in range(1, nb):
        A('buffer_load_dword v9, v4, s[16:19], s33 offen')
    A.label(f'{name}_td')
    A.vmq += ['t'] * nb

def g1_mainloop(A, swapped, rowstats, hook=None):
    NC = 10
    A(f'v_mov_b32 v{ONES}, 0x3f803f80')
    A(f'v_mov_b32 v{ONES+1}, 0x3f803f80')
    A.st()
    A.wait_vm(('dma', 0))
    A('s_barrier')
    A.st()
    for r in g1_read_list(0):
        A.ld('fr', r)
    for c in range(NC):
        b = c & 1
        A.wait_ld_all()
        RL = []
        if c < NC - 1:
            A.wait_vm(('dma', c + 1))
            A('s_barrier')
            if c in (0, 2, 5, 8):
                A.st()
            RL = g1_read_list(c + 1)
        dots = []
        def sm(acc, a, bsrc, first):
            cin = '0' if first else vr(acc)
            return f'v_mfma_f32_4x4x4_16b_bf16 {vr(acc)}, {vr(a,2)}, {vr(bsrc,2)}, {cin}'
        for hf in range(2):
            f0 = (c == 0 and hf == 0)
            dots.append(sm(SM + 16, FW(b, 0) + 2 * hf, ONES, f0))
            if rowstats:
                for i in range(2):
                    dots.append(sm(SM + 8 * i, FX(b, 0, i) + 2 * hf, ONES, f0))
                    dots.append(sm(SM + 8 * i + 4, FX(b, 0, i) + 2 * hf, FX(b, 0, i) + 2 * hf, f0))
            dots.append(sm(SM + 16, FW(b, 2) + 2 * hf, ONES, False))
        per = (len(dots) + 7) // 8
        for ks in range(4):
            for i in range(2):
                cin = '0' if (c == 0 and ks == 0) else vr(ACC+16*i,16)
                if swapped:
                    A(f'v_mfma_f32_32x32x16_bf16 {vr(ACC+16*i,16)}, {vr(FW(b,ks))}, {vr(FX(b,ks,i))}, {cin}')
                else:
                    A(f'v_mfma_f32_32x32x16_bf16 {vr(ACC+16*i,16)}, {vr(FX(b,ks,i))}, {vr(FW(b,ks))}, {cin}')
                for r in RL[:2]:
                    A.ld('fr', r)
                RL = RL[2:]
                n8 = 2 * ks + i
                todo = [2, 3] if c == 0 else ([c + 3] if c + 3 < NC else [])
                for ti, cc in enumerate(todo):
                    if n8 == 4 * ti:
                        g1_dma(A, cc, 0)
                    if n8 == 4 * ti + 2:
                        g1_dma(A, cc, 1)
                if n8 == 5 and hook is not None:
                    hook(c)
                for d in dots[:per]:
                    A(d)
                dots = dots[per:]
        assert not RL and not dots
    A.st()
    A("""
    v_and_b32 v4, 3, v1
    v_cmp_eq_u32 s[52:53], 1, v4
    v_cmp_eq_u32 s[54:55], 2, v4
    v_cmp_eq_u32 s[56:57], 3, v4
    """)
    sel = [(CS, SM + 16)] + ([(RS + q, SM + 4 * q) for q in range(4)] if rowstats else [])
    for dst, src in sel:
        A(f'v_cndmask_b32 v{dst}, v{src}, v{src+1}, s[52:53]')
    for dst, src in sel:
        A(f'v_cndmask_b32 v{dst}, v{dst}, v{src+2}, s[54:55]')
    for dst, src in sel:
        A(f'v_cndmask_b32 v{dst}, v{dst}, v{src+3}, s[56:57]')

def pk(op, d, a, b, c=None, neg0=False):
    t = f'v_pk_{op}_f32 v[{d}:{d+1}], v[{a}:{a+1}], v[{b}:{b+1}]'
    if c is not None:
        t += f', v[{c}:{c+1}]'
    if neg0:
        t += ' neg_lo:[1,0,0] neg_hi:[1,0,0]'
    return t

KC = 240
def epi_consts(A):
    vals = [1.0, LOG2E, 1e-6, KKAPPA, -2 * KBETA * LOG2E]
    for i, v in enumerate(vals):
        A(f'v_mov_b32 v{KC+2*i}, {f32(v)}')
        A(f'v_mov_b32 v{KC+2*i+1}, {f32(v)}')
C_ONE, C_L2E, C_EPS, C_KAP, C_CG = KC, KC + 2, KC + 4, KC + 6, KC + 8

def act_code(A, kind, regs, tmp):
    R0 = regs[0]
    P = tmp; OUT = tmp + 8; E = tmp + 16; G = tmp + 32
    if kind == 'plain':
        for k in range(8):
            A(f'v_cvt_pk_bf16_f32 v{OUT+k}, v{R0+2*k}, v{R0+2*k+1}')
        return OUT
    for k in range(8):
        A(f'v_cvt_pk_bf16_f32 v{P+k}, v{R0+2*k}, v{R0+2*k+1}')
    for k in range(8):
        A(f'v_lshlrev_b32 v{R0+2*k}, 16, v{P+k}')
        A(f'v_and_b32 v{R0+2*k+1}, 0xffff0000, v{P+k}')
    if kind == 'phi':
        for k in range(8):
            A(pk('mul', E + 2 * k, R0 + 2 * k, C_L2E))
        for k in range(16):
            A(f'v_exp_f32 v{E+k}, v{E+k}')
        for k in range(8):
            A(pk('add', G + 2 * k, R0 + 2 * k, C_ONE))
        for k in range(8):
            A(f'v_cvt_pk_bf16_f32 v{P+k}, v{E+2*k}, v{E+2*k+1}')
        for k in range(8):
            A(f'v_lshlrev_b32 v{E+2*k}, 16, v{P+k}')
            A(f'v_and_b32 v{E+2*k+1}, 0xffff0000, v{P+k}')
        for k in range(8):
            A(pk('add', E + 2 * k, E + 2 * k, C_EPS))
        for k0 in range(0, 16, 4):
            for k in range(k0, k0 + 4):
                A(f'v_cmp_lt_f32 s[{52+2*(k-k0)}:{53+2*(k-k0)}], 0, v{R0+k}')
            for k in range(k0, k0 + 4):
                A(f'v_cndmask_b32 v{E+k}, v{E+k}, v{G+k}, s[{52+2*(k-k0)}:{53+2*(k-k0)}]')
        for k in range(8):
            A(f'v_cvt_pk_bf16_f32 v{OUT+k}, v{E+2*k}, v{E+2*k+1}')
        return OUT
    if kind == 'gelu':
        for k in range(8):
            A(pk('mul', E + 2 * k, R0 + 2 * k, R0 + 2 * k))
        for k in range(8):
            A(pk('mul', G + 2 * k, R0 + 2 * k, C_CG))
        for k in range(8):
            A(pk('fma', E + 2 * k, E + 2 * k, C_KAP, C_ONE))
        for k in range(8):
            A(pk('mul', E + 2 * k, E + 2 * k, G + 2 * k))
        for k in range(16):
            A(f'v_exp_f32 v{E+k}, v{E+k}')
        for k in range(8):
            A(pk('add', E + 2 * k, E + 2 * k, C_ONE))
        for k in range(16):
            A(f'v_rcp_f32 v{E+k}, v{E+k}')
        for k in range(8):
            A(pk('mul', E + 2 * k, E + 2 * k, R0 + 2 * k))
        for k in range(8):
            A(f'v_cvt_pk_bf16_f32 v{OUT+k}, v{E+2*k}, v{E+2*k+1}')
        return OUT
    raise ValueError(kind)

def swap_store(A, OUT, voff, srd_, soff, imm0, gstep=32):
    for gp in range(2):
        b = OUT + 4 * gp
        A(f'v_permlane32_swap_b32 v{b}, v{b+2}')
        A(f'v_permlane32_swap_b32 v{b+1}, v{b+3}')
    for gp in range(2):
        b = OUT + 4 * gp
        A.vm('st', f'buffer_store_dwordx4 {vr(b)}, v{voff}, s[{srd_}:{srd_+3}], s{soff} offen offset:{imm0 + gstep*gp}')

def k1_epilogue(A, kind):
    CS2 = T0 + 6
    MBS = [T0 + 8, T0 + 40]; RIS = [T0 + 24, T0 + 56]; TMP = T0 + 72
    for i in range(2):
        for g in range(4):
            A.ld(('mb', i), f'ds_read_b128 {vr(MBS[i]+4*g)}, v{T0+4} offset:{(32*i+8*g)*4}')
            A.ld(('mb', i), f'ds_read_b128 {vr(RIS[i]+4*g)}, v{T0+4} offset:{512+(32*i+8*g)*4}')
    for i in range(2):
        A.wait_ld(('mb', i))
        regs = [ACC + 16 * i + k for k in range(16)]
        for k in range(8):
            A(pk('fma', regs[2*k], MBS[i] + 2 * k, CS2, regs[2*k], neg0=True))
        for k in range(8):
            A(pk('mul', regs[2*k], regs[2*k], RIS[i] + 2 * k))
        OUT = act_code(A, kind, regs, TMP + 48 * i if kind != 'x' else TMP)
        if kind == 'gelu':
            swap_store(A, OUT, T0 + 5, 20, 39, 64 * i)
        else:
            swap_store(A, OUT, T0 + 2, 20, 42, 1024 * i, 512)

def g1_entry(A, done_lbl):
    A(f"""
    s_cmp_ge_u32 s2, 256
    s_cbranch_scc1 {done_lbl}
    s_load_dwordx4 s[4:7], s[0:1], 0
    s_load_dwordx2 s[8:9], s[0:1], 32
    s_load_dwordx2 s[10:11], s[0:1], 80
    v_lshrrev_b32 v2, 6, v0
    s_nop 0
    v_readfirstlane_b32 s28, v2
    """)

def gen_k1(A):
    A.label('k1_kernel')
    A.st()
    g1_entry(A, 'k1_done')
    A("""
    s_and_b32 s33, s2, 7
    s_lshr_b32 s34, s2, 3
    s_lshr_b32 s24, s33, 1
    s_lshl_b32 s24, s24, 2
    s_lshr_b32 s41, s34, 3
    s_add_u32 s24, s24, s41
    s_and_b32 s25, s33, 1
    s_lshl_b32 s25, s25, 3
    s_and_b32 s40, s34, 7
    s_add_u32 s25, s25, s40
    s_lshr_b32 s29, s28, 2
    s_and_b32 s30, s28, 3
    s_movk_i32 s26, 3840
    s_mov_b32 s18, 2457600
    s_movk_i32 s33, 1280
    s_cmp_lt_u32 s25, 10
    s_cselect_b32 s26, s26, 3072
    s_cselect_b32 s18, s18, 1966080
    s_cselect_b32 s33, s33, -1024
    s_lshl_b32 s27, s25, 8
    s_add_i32 s27, s27, s33
    s_mov_b32 s19, 0x00020000
    s_lshl_b32 s35, s28, 11
    s_lshl_b32 s38, s26, 6
    s_lshr_b32 s32, s2, 3
    s_mul_i32 s33, s32, 6554
    s_lshr_b32 s33, s33, 16
    s_mul_i32 s33, s33, 10
    s_sub_u32 s32, s32, s33
    """)
    if os.environ.get('NOG1ROT'):
        A('s_mov_b32 s32, 0')
    g1_dma_setup(A)
    A("""
    s_waitcnt lgkmcnt(0)
    s_cmp_lt_u32 s25, 10
    s_cselect_b32 s16, s6, s8
    s_cselect_b32 s17, s7, s9
    s_and_b32 s17, s17, 0xffff
    """)
    srd(A, 12, 4, 2048 * 1280)
    g1_touch(A, 'k1', 1)
    for c in range(2):
        g1_dma(A, c)
    srd(A, 20, 10, WS_END)
    g1_lane_setup(A)
    epi_consts(A)
    def k1_hook(c):
        PFC = int(os.environ.get('K1PFC', '7'))
        if os.environ.get('NOPF') or c not in (PFC - 1, PFC):
            return
        if c == PFC - 1:
            A('s_load_dwordx2 s[56:57], s[0:1], 40')
            return
        if os.environ.get('K1WSP', '1') == '1':
            A(f"""
            s_lshl_b32 s42, s2, 3
            s_add_u32 s42, s42, s28
            s_lshl_b32 s42, s42, 12
            v_and_b32 v5, 31, v1
            v_lshlrev_b32 v5, 7, v5
            s_and_b32 s57, s57, 0xffff
            s_mov_b32 s58, {2048*4096}
            s_mov_b32 s59, 0x00020000
            """)
            A.vm('pf', 'buffer_load_dword v8, v5, s[56:59], s42 offen')
        A(f"""
        s_lshr_b32 s42, s2, 3
        s_mul_i32 s42, s42, 20
        s_and_b32 s43, s28, 3
        s_lshl_b32 s43, s43, 6
        v_add_u32 v4, s43, v1
        v_lshrrev_b32 v5, 4, v4
        v_and_b32 v6, 15, v4
        s_cmp_lt_u32 s28, 4
        s_cselect_b32 s44, s6, s8
        s_cselect_b32 s45, s7, s9
        s_movk_i32 s43, 3840
        s_mov_b32 s46, 2457600
        s_cselect_b32 s43, s43, 3072
        s_cselect_b32 s46, s46, 1966080
        s_and_b32 s45, s45, 0xffff
        s_mov_b32 s47, 0x00020000
        v_add_u32 v5, s42, v5
        v_mul_lo_u32 v5, v5, s43
        v_min_u32 v6, 11, v6
        v_lshl_add_u32 v5, v6, 7, v5
        s_lshl_b32 s43, s43, 4
        """)
        A.vm('pf', 'buffer_load_dword v8, v5, s[44:47], 0 offen')
        A.vm('pf', 'buffer_load_dword v8, v5, s[44:47], s43 offen')
    g1_mainloop(A, swapped=False, rowstats=True, hook=k1_hook)
    p = T0
    for r in (RS, RS + 1, RS + 2, RS + 3, CS):
        A(f'v_mov_b32 v{p}, v{r}')
        A(f'v_permlane32_swap_b32 v{r}, v{p}')
        A(f'v_add_f32 v{r}, v{r}, v{p}')
    A(f"""
    s_lshl_b32 s33, s30, 10
    s_lshl_b32 s34, s29, 9
    s_add_u32 s33, s33, s34
    s_add_u32 s33, s33, {G1_RP}
    v_lshlrev_b32 v{T0+1}, 3, v2
    v_add_u32 v{T0+1}, s33, v{T0+1}
    ds_write_b64 v{T0+1}, v[{RS}:{RS+1}]
    ds_write_b64 v{T0+1}, v[{RS+2}:{RS+3}] offset:256
    s_lshl_b32 s33, s30, 7
    s_add_u32 s33, s33, {G1_CP}
    v_lshlrev_b32 v{T0+2}, 2, v2
    v_add_u32 v{T0+2}, s33, v{T0+2}
    s_lshl_b32 s34, s29, 9
    v_add_u32 v{T0+3}, s34, v{T0+2}
    ds_write_b32 v{T0+3}, v{CS}
    s_waitcnt lgkmcnt(0)
    s_barrier
    ds_read_b32 v{T0+6}, v{T0+2}
    ds_read_b32 v{T0+7}, v{T0+2} offset:512
    s_cmp_lt_u32 s28, 2
    s_cbranch_scc0 k1_nofin
    v_lshlrev_b32 v{T0+1}, 3, v0
    v_add_u32 v{T0+1}, {G1_RP}, v{T0+1}
    ds_read_b64 v[{T0+8}:{T0+9}], v{T0+1}
    ds_read_b64 v[{T0+10}:{T0+11}], v{T0+1} offset:1024
    ds_read_b64 v[{T0+12}:{T0+13}], v{T0+1} offset:2048
    ds_read_b64 v[{T0+14}:{T0+15}], v{T0+1} offset:3072
    s_waitcnt lgkmcnt(0)
    v_pk_add_f32 v[{T0+8}:{T0+9}], v[{T0+8}:{T0+9}], v[{T0+10}:{T0+11}]
    v_pk_add_f32 v[{T0+12}:{T0+13}], v[{T0+12}:{T0+13}], v[{T0+14}:{T0+15}]
    v_pk_add_f32 v[{T0+8}:{T0+9}], v[{T0+8}:{T0+9}], v[{T0+12}:{T0+13}]
    """)
    a, b_, pp = T0 + 8, T0 + 9, T0 + 10
    A(f'v_mul_f32 v{a}, {f32(1/640)}, v{a}')
    A(f'v_mul_f32 v{b_}, {f32(1/640)}, v{b_}')
    A(f'v_fma_f32 v{b_}, -v{a}, v{a}, v{b_}')
    A(f'v_max_f32 v{b_}, 0, v{b_}')
    rnd_pair(A, pp, a, b_)
    A(f'v_add_f32 v{b_}, {f32(1e-5)}, v{b_}')
    A(f'v_cvt_pk_bf16_f32 v{pp}, v{b_}, v{b_}')
    A(f'v_lshlrev_b32 v{b_}, 16, v{pp}')
    A(f'v_sqrt_f32 v{b_}, v{b_}')
    A(f'v_cvt_pk_bf16_f32 v{pp}, v{b_}, v{b_}')
    A(f'v_lshlrev_b32 v{b_}, 16, v{pp}')
    A(f'v_rcp_f32 v{b_}, v{b_}')
    A(f"""
    v_lshlrev_b32 v{T0+1}, 2, v0
    v_add_u32 v{T0+11}, {G1_MB}, v{T0+1}
    ds_write_b32 v{T0+11}, v{a}
    ds_write_b32 v{T0+11}, v{b_} offset:512
    s_cmp_lg_u32 s25, 0
    s_cbranch_scc1 k1_nofin
    v_lshlrev_b32 v{T0+1}, 3, v0
    s_lshl_b32 s33, s24, 10
    s_add_u32 s33, s33, {STATS}
    buffer_store_dwordx2 v[{a}:{b_}], v{T0+1}, s[20:23], s33 offen
    """)
    A.label('k1_nofin')
    A(f"""
    s_waitcnt lgkmcnt(0)
    v_add_f32 v{T0+6}, v{T0+6}, v{T0+7}
    s_lshl_b32 s33, s29, 6
    v_lshlrev_b32 v{T0+4}, 2, v3
    v_add_u32 v{T0+4}, s33, v{T0+4}
    v_lshlrev_b32 v{T0+4}, 2, v{T0+4}
    v_add_u32 v{T0+4}, {G1_MB}, v{T0+4}
    v_mov_b32 v{T0+7}, v{T0+6}
    s_lshl_b32 s34, s30, 5
    v_add_u32 v{T0+5}, s34, v2
    v_lshlrev_b32 v{T0+5}, 12, v{T0+5}
    v_lshlrev_b32 v{T0+1}, 3, v3
    v_add_u32 v{T0+1}, s33, v{T0+1}
    v_lshlrev_b32 v{T0+1}, 1, v{T0+1}
    v_add_u32 v{T0+5}, v{T0+5}, v{T0+1}
    s_lshl_b32 s39, s25, 19
    s_lshl_b32 s33, s24, 12
    s_add_u32 s42, s39, s33
    s_lshl_b32 s33, s24, 8
    s_add_u32 s39, s39, s33
    v_lshrrev_b32 v{T0+2}, 4, v1
    v_and_b32 v{T0+2}, 1, v{T0+2}
    s_lshl_b32 s33, s30, 1
    v_add_u32 v{T0+2}, s33, v{T0+2}
    v_lshlrev_b32 v{T0+2}, 16, v{T0+2}
    v_and_b32 v{T0+1}, 15, v1
    v_lshl_add_u32 v{T0+2}, v{T0+1}, 4, v{T0+2}
    v_lshl_add_u32 v{T0+2}, v3, 8, v{T0+2}
    s_lshl_b32 s33, s29, 11
    v_add_u32 v{T0+2}, s33, v{T0+2}
    s_barrier
    s_cmp_lt_u32 s25, 5
    s_cbranch_scc1 k1_phi
    s_cmp_lt_u32 s25, 10
    s_cbranch_scc1 k1_plain
    """)
    A.reset_counters()
    A.st()
    k1_epilogue(A, 'gelu')
    n0 = A.st.n
    A.st.flush(8, 0)
    A.st.n = n0 - 1
    A('s_endpgm')
    A.label('k1_phi')
    A('s_nop 4')
    A.reset_counters()
    A.st()
    k1_epilogue(A, 'phi')
    A.st.flush(8, 0)
    A.st.n = n0 - 1
    A('s_endpgm')
    A.label('k1_plain')
    A('s_nop 4')
    A.reset_counters()
    A.st()
    k1_epilogue(A, 'plain')
    A.st.flush(8, 0)
    A.label('k1_done')
    A('s_endpgm')

def k2_epilogue(A, kind):
    CS4 = T0 + 8; CS4B = T0 + 24; MB2 = T0 + 40; TMP = T0 + 48
    for g in range(4):
        A.ld('cs', f'ds_read_b128 {vr(CS4+4*g)}, v{T0+4} offset:{32*g}')
        A.ld('cs', f'ds_read_b128 {vr(CS4B+4*g)}, v{T0+4} offset:{512+32*g}')
    A.wait_vm('stats')
    for i in range(2):
        A(f'v_mov_b32 v{MB2+4*i}, v{MBR+2*i}')
        A(f'v_mov_b32 v{MB2+4*i+1}, v{MBR+2*i}')
        A(f'v_mov_b32 v{MB2+4*i+2}, v{MBR+2*i+1}')
        A(f'v_mov_b32 v{MB2+4*i+3}, v{MBR+2*i+1}')
    A.wait_ld_all()
    for k in range(8):
        A(pk('add', CS4 + 2 * k, CS4 + 2 * k, CS4B + 2 * k))
    for i in range(2):
        regs = [ACC + 16 * i + k for k in range(16)]
        for k in range(8):
            A(pk('fma', regs[2*k], MB2 + 4 * i, CS4 + 2 * k, regs[2*k], neg0=True))
        for k in range(8):
            A(pk('mul', regs[2*k], regs[2*k], MB2 + 4 * i + 2))
        OUT = act_code(A, kind, regs, TMP + 48 * i)
        swap_store(A, OUT, T0 + 5 + (2 if i else 0), 20, 39, 0)

def gen_k2(A):
    A.label('k2_kernel')
    A.st()
    g1_entry(A, 'k2_done')
    A("""
    s_cmp_ge_u32 s2, 240
    s_cbranch_scc1 k2_wt
    s_cmp_ge_u32 s2, 208
    s_cbranch_scc1 k2_kv
    s_cmp_ge_u32 s2, 176
    s_cbranch_scc1 k2_ln
    s_and_b32 s33, s2, 7
    s_lshr_b32 s34, s2, 3
    s_lshl_b32 s24, s33, 1
    s_cmp_ge_u32 s34, 11
    s_cselect_b32 s41, 1, 0
    s_cselect_b32 s25, 11, 0
    s_add_u32 s24, s24, s41
    s_sub_u32 s25, s34, s25
    s_and_b32 s40, s25, 7
    s_lshr_b32 s29, s28, 2
    s_and_b32 s30, s28, 3
    s_movk_i32 s26, 3840
    s_mov_b32 s18, 2457600
    s_cmp_lt_u32 s25, 5
    s_cselect_b32 s26, s26, 3072
    s_cselect_b32 s18, s18, 1966080
    s_cselect_b32 s33, 0, -1280
    s_lshl_b32 s27, s25, 8
    s_add_i32 s27, s27, s33
    s_mov_b32 s19, 0x00020000
    s_lshl_b32 s35, s28, 11
    s_lshl_b32 s38, s26, 6
    s_lshr_b32 s32, s2, 3
    s_mul_i32 s33, s32, 6554
    s_lshr_b32 s33, s33, 16
    s_mul_i32 s33, s33, 10
    s_sub_u32 s32, s32, s33
    """)
    if os.environ.get('NOG1ROT'):
        A('s_mov_b32 s32, 0')
    g1_dma_setup(A)
    A("""
    s_waitcnt lgkmcnt(0)
    s_cmp_lt_u32 s25, 5
    s_cselect_b32 s16, s6, s8
    s_cselect_b32 s17, s7, s9
    s_and_b32 s17, s17, 0xffff
    """)
    srd(A, 12, 4, 2048 * 1280)
    g1_touch(A, 'k2', 2)
    for c in range(2):
        g1_dma(A, c)
    srd(A, 20, 10, WS_END)
    g1_lane_setup(A)
    A(f"""
    s_lshl_b32 s33, s24, 10
    s_lshl_b32 s34, s29, 9
    s_add_u32 s33, s33, s34
    s_add_u32 s33, s33, {STATS}
    v_lshlrev_b32 v4, 3, v2
    """)
    A.vm('stats', f'buffer_load_dwordx2 v[{MBR}:{MBR+1}], v4, s[20:23], s33 offen')
    A.vm('stats', f'buffer_load_dwordx2 v[{MBR+2}:{MBR+3}], v4, s[20:23], s33 offen offset:256')
    epi_consts(A)
    def k2_hook(c):
        if os.environ.get('NOPF') or os.environ.get('K2GPF', '1') != '1' or c not in (6, 7):
            return
        if c == 6:
            A(f"""
            s_load_dwordx2 s[44:45], s[0:1], 40
            s_and_b32 s42, s2, 7
            s_lshr_b32 s42, s42, 1
            s_lshl_b32 s42, s42, 21
            s_lshr_b32 s43, s2, 3
            s_lshl_b32 s43, s43, 3
            s_add_u32 s43, s43, s28
            s_mul_i32 s43, s43, 12288
            s_add_u32 s42, s42, s43
            v_lshlrev_b32 v5, 7, v1
            s_mov_b32 s46, {2048*4096}
            s_mov_b32 s47, 0x00020000
            """)
        else:
            A(f"""
            s_and_b32 s45, s45, 0xffff
            s_add_u32 s43, s42, 8192
            """)
            A.vm('pf', 'buffer_load_dword v8, v5, s[44:47], s42 offen')
            A.vm('pf', 'buffer_load_dword v8, v5, s[44:47], s43 offen')
    g1_mainloop(A, swapped=True, rowstats=False, hook=k2_hook)
    vq = list(A.vmq)
    A(f"""
    v_mov_b32 v{T0}, v{CS}
    v_permlane32_swap_b32 v{CS}, v{T0}
    v_add_f32 v{CS}, v{CS}, v{T0}
    s_lshl_b32 s33, s30, 7
    s_add_u32 s33, s33, {G1_CP}
    s_lshl_b32 s34, s29, 9
    s_add_u32 s34, s34, s33
    v_lshlrev_b32 v{T0+4}, 2, v2
    v_add_u32 v{T0+4}, s34, v{T0+4}
    ds_write_b32 v{T0+4}, v{CS}
    v_lshlrev_b32 v{T0+4}, 4, v3
    v_add_u32 v{T0+4}, s33, v{T0+4}
    s_lshl_b32 s33, s29, 6
    s_movk_i32 s34, 1280
    s_cmp_lt_u32 s25, 5
    s_cselect_b32 s34, s34, 1536
    v_add_u32 v{T0+5}, s33, v2
    v_mul_lo_u32 v{T0+5}, v{T0+5}, s34
    s_lshl_b32 s33, s30, 6
    v_lshlrev_b32 v{T0+7}, 4, v3
    v_add_u32 v{T0+7}, s33, v{T0+7}
    v_add_u32 v{T0+5}, v{T0+5}, v{T0+7}
    s_lshl_b32 s33, s34, 5
    v_add_u32 v{T0+7}, s33, v{T0+5}
    s_lshl_b32 s33, s34, 7
    s_mul_i32 s39, s33, s24
    s_add_u32 s39, s39, s27
    s_mov_b32 s33, {PQ}
    s_cmp_lt_u32 s25, 5
    s_cselect_b32 s33, s33, {Z1}
    s_add_u32 s39, s39, s33
    s_waitcnt lgkmcnt(0)
    s_barrier
    s_cmp_lt_u32 s25, 5
    s_cbranch_scc1 k2_phi
    """)
    A.reset_counters(); A.vmq = list(vq)
    k2_epilogue(A, 'gelu')
    n0 = A.st.n
    A.st.flush(8, 1)
    A.st.n = n0
    A('s_endpgm')
    A.label('k2_phi')
    A('s_nop 4')
    A.reset_counters(); A.vmq = list(vq)
    k2_epilogue(A, 'phi')
    A.st.flush(8, 1)
    A.st.n = 1
    A('s_endpgm')
    gen_k2_ln(A)
    gen_k2_kv(A)
    gen_k2_wt(A)
    A.label('k2_done')
    A('s_endpgm')

def lane_reduce8(A, regs, tmp):
    for r in regs:
        A(f'v_add_f32_dpp v{r}, v{r}, v{r} row_ror:8 row_mask:0xf bank_mask:0xf')
    for r in regs:
        A(f'v_mov_b32 v{tmp}, v{r}')
        A(f'v_permlane16_swap_b32 v{r}, v{tmp}')
        A(f'v_add_f32 v{r}, v{r}, v{tmp}')
    for r in regs:
        A(f'v_mov_b32 v{tmp}, v{r}')
        A(f'v_permlane32_swap_b32 v{r}, v{tmp}')
        A(f'v_add_f32 v{r}, v{r}, v{tmp}')

def gen_k2_ln(A):
    A.label('k2_ln')
    A.reset_counters()
    X = 16; U = 64; S = 160; M = 168; R = 176; TM = 184; RD = 192
    A('''
    s_waitcnt lgkmcnt(0)
    s_sub_u32 s24, s2, 176
    ''')
    srd(A, 20, 10, WS_END)
    A(f'''
    v_and_b32 v1, 63, v0
    v_lshrrev_b32 v2, 3, v1
    v_and_b32 v3, 7, v1
    s_mul_i32 s33, s28, 96
    v_add_u32 v2, s33, v2
    v_lshlrev_b32 v2, 12, v2
    v_lshlrev_b32 v4, 4, v3
    v_add_u32 v2, v2, v4
    s_lshl_b32 s33, s24, 7
    v_add_u32 v2, s33, v2
    ''')
    for it in range(12):
        A(f's_mov_b32 s34, {1280*4096 + 32768*it}')
        A.vm(('x', it), f'buffer_load_dwordx4 {vr(X+4*it)}, v2, s[20:23], s34 offen')
    for e in range(8):
        A(f'v_mov_b32 v{S+e}, 0')
    A(f'''
    v_lshrrev_b32 v7, 2, v3
    v_lshlrev_b32 v7, 10, v7
    v_lshrrev_b32 v8, 3, v1
    v_lshlrev_b32 v8, 4, v8
    v_add_u32 v7, v7, v8
    v_and_b32 v8, 3, v3
    v_lshlrev_b32 v8, 8, v8
    v_add_u32 v7, v7, v8
    s_mul_i32 s35, s28, {6*65536}
    s_lshl_b32 s33, s24, 11
    s_add_u32 s35, s35, s33
    s_add_u32 s35, s35, {Z2NT}
    ''')
    A(f'''
    v_lshlrev_b32 v5, 5, v3
    s_lshl_b32 s33, s28, 8
    v_add_u32 v6, s33, v5
    ''')
    for it in range(12):
        A.wait_vm(('x', it))
        for d in range(4):
            A(f'v_lshlrev_b32 v{U+8*it+2*d}, 16, v{X+4*it+d}')
            A(f'v_and_b32 v{U+8*it+2*d+1}, 0xffff0000, v{X+4*it+d}')
        for e in range(0, 8, 2):
            A(pk('add', S + e, S + e, U + 8 * it + e))
    def xwave(base_off, dst):
        lane_reduce8(A, [S + e for e in range(8)], TM)
        A(f'ds_write_b128 v6, {vr(S)} offset:{base_off}')
        A(f'ds_write_b128 v6, {vr(S+4)} offset:{base_off+16}')
        A('s_waitcnt lgkmcnt(0)')
        A('s_barrier')
        for w in range(8):
            A(f'ds_read_b128 {vr(RD+8*w)}, v5 offset:{base_off+256*w}')
            A(f'ds_read_b128 {vr(RD+8*w+4)}, v5 offset:{base_off+256*w+16}')
        A('s_waitcnt lgkmcnt(0)')
        for e in range(8):
            A(f'v_add_f32 v{dst+e}, v{RD+e}, v{RD+8+e}')
        for w in range(2, 8):
            for e in range(8):
                A(f'v_add_f32 v{dst+e}, v{dst+e}, v{RD+8*w+e}')
        for e in range(8):
            A(f'v_mul_f32 v{dst+e}, {f32(1/768)}, v{dst+e}')
    xwave(0, M)
    for e in range(8):
        A(f'v_mov_b32 v{S+e}, 0')
    for it in range(12):
        for e in range(0, 8, 2):
            A(f'v_pk_add_f32 v[{TM+e}:{TM+e+1}], v[{U+8*it+e}:{U+8*it+e+1}], v[{M+e}:{M+e+1}] neg_lo:[0,1] neg_hi:[0,1]')
        for e in range(0, 8, 2):
            A(pk('fma', S + e, TM + e, TM + e, S + e))
    xwave(4096, R)
    for e in range(8):
        rnd_pair(A, TM, M + e, R + e)
    for e in range(8):
        A(f'v_add_f32 v{R+e}, {f32(1e-5)}, v{R+e}')
    for e in range(0, 8, 2):
        rnd_pair(A, TM, R + e, R + e + 1)
    for e in range(8):
        A(f'v_sqrt_f32 v{R+e}, v{R+e}')
    for e in range(0, 8, 2):
        rnd_pair(A, TM, R + e, R + e + 1)
    for e in range(8):
        A(f'v_rcp_f32 v{R+e}, v{R+e}')
    for it in range(12):
        for e in range(0, 8, 2):
            A(f'v_pk_add_f32 v[{U+8*it+e}:{U+8*it+e+1}], v[{U+8*it+e}:{U+8*it+e+1}], v[{M+e}:{M+e+1}] neg_lo:[0,1] neg_hi:[0,1]')
        for e in range(0, 8, 2):
            rnd_pair(A, TM + e // 2, U + 8 * it + e, U + 8 * it + e + 1)
        for e in range(0, 8, 2):
            A(pk('mul', U + 8 * it + e, U + 8 * it + e, R + e))
        for d in range(4):
            A(f'v_cvt_pk_bf16_f32 v{X+4*it+d}, v{U+8*it+2*d}, v{U+8*it+2*d+1}')
        A(f's_add_u32 s34, s35, {(it>>1)*65536}')
        A(f'buffer_store_dwordx4 {vr(X+4*it)}, v7, s[20:23], s34 offen offset:{(it&1)*128}')
    A.st.flush(8, 1)
    A.st.n = 1
    A('s_endpgm')

def wsp_prefetch(A, jexpr_code):
    if os.environ.get('NOPF') or not os.environ.get('AUXPF'):
        return
    A(f"""
    s_load_dwordx2 s[44:45], s[0:1], 40
    {jexpr_code}
    s_lshl_b32 s43, s43, 3
    s_add_u32 s43, s43, s28
    s_mul_i32 s43, s43, 43776
    s_and_b32 s42, s2, 7
    s_lshr_b32 s42, s42, 1
    s_lshl_b32 s42, s42, 21
    s_add_u32 s42, s42, s43
    v_and_b32 v5, 63, v0
    v_lshlrev_b32 v5, 7, v5
    s_mov_b32 s46, {2048*4096}
    s_mov_b32 s47, 0x00020000
    s_waitcnt lgkmcnt(0)
    s_and_b32 s45, s45, 0xffff
    """)
    for q in range(6):
        A.vm('pf', 'buffer_load_dword v8, v5, s[44:47], s42 offen')
        A('s_add_u32 s42, s42, 8192')

def gen_k2_kv(A):
    A.label('k2_kv')
    A.reset_counters()
    FR = 16; KVA = 144; ZA = 160; ON = 168; TM = 172
    A("""
    s_waitcnt lgkmcnt(0)
    s_sub_u32 s24, s2, 208
    """)
    wsp_prefetch(A, 's_lshr_b32 s43, s24, 3')
    srd(A, 20, 10, WS_END)
    A(f"""
    v_and_b32 v1, 63, v0
    v_and_b32 v2, 15, v1
    v_lshrrev_b32 v3, 4, v1
    s_mul_i32 s33, s24, 20
    s_lshr_b32 s25, s33, 4
    s_and_b32 s26, s33, 15
    s_lshl_b32 s33, s25, 16
    s_lshl_b32 s34, s28, 13
    s_add_u32 s33, s33, s34
    v_lshlrev_b32 v4, 4, v1
    v_add_u32 v4, s33, v4
    v_add_u32 v5, 0x10000, v4
    s_mov_b32 s34, {40*65536}
    s_mov_b32 s35, {40*65536+4096}
    s_movk_i32 s36, 4096
    """)
    for q in range(8):
        so_k = '0' if q < 4 else 's36'
        so_v = 's34' if q < 4 else 's35'
        o = 1024 * (q & 3)
        A.vm(('f', q), f'buffer_load_dwordx4 {vr(FR+16*q)}, v4, s[20:23], {so_k} offen offset:{o}')
        A.vm(('f', q), f'buffer_load_dwordx4 {vr(FR+16*q+4)}, v5, s[20:23], {so_k} offen offset:{o}')
        A.vm(('f', q), f'buffer_load_dwordx4 {vr(FR+16*q+8)}, v4, s[20:23], {so_v} offen offset:{o}')
        A.vm(('f', q), f'buffer_load_dwordx4 {vr(FR+16*q+12)}, v5, s[20:23], {so_v} offen offset:{o}')
    for i in range(24):
        A(f'v_mov_b32 v{KVA+i}, 0')
    for i in range(4):
        A(f'v_mov_b32 v{ON+i}, 0x3f803f80')
    for q in range(8):
        A.wait_vm(('f', q))
        for a_ in range(2):
            for b_ in range(2):
                d = KVA + 8 * a_ + 4 * b_
                A(f'v_mfma_f32_16x16x32_bf16 {vr(d)}, {vr(FR+16*q+4*a_)}, {vr(FR+16*q+8+4*b_)}, {vr(d)}')
            A(f'v_mfma_f32_16x16x32_bf16 {vr(ZA+4*a_)}, {vr(FR+16*q+4*a_)}, {vr(ON)}, {vr(ZA+4*a_)}')
    A(f"""
    s_lshl_b32 s33, s28, 12
    v_lshlrev_b32 v6, 7, v2
    v_lshl_add_u32 v6, v3, 4, v6
    v_add_u32 v6, s33, v6
    s_lshl_b32 s33, s28, 7
    v_lshlrev_b32 v7, 4, v3
    v_add_u32 v7, s33, v7
    """)
    for a_ in range(2):
        for b_ in range(2):
            A(f'ds_write_b128 v6, {vr(KVA+8*a_+4*b_)} offset:{2048*b_ + 64*a_}')
        A(f'ds_write_b128 v7, {vr(ZA+4*a_)} offset:{32768+64*a_}')
    A(f"""
    s_waitcnt lgkmcnt(0)
    s_barrier
    v_lshrrev_b32 v8, 4, v0
    v_add_u32 v8, s26, v8
    v_min_u32 v8, 31, v8
    v_and_b32 v9, 15, v0
    v_lshlrev_b32 v10, 1, v9
    v_add_u32 v10, s26, v10
    v_min_u32 v10, 30, v10
    v_lshlrev_b32 v10, 2, v10
    v_lshl_add_u32 v8, v8, 7, v10
    """)
    AF = 16; BF = 48
    for w in range(8):
        A(f'ds_read_b64 {vr(AF+2*w,2)}, v8 offset:{4096*w}')
        A(f'ds_read_b64 {vr(BF+2*w,2)}, v10 offset:{32768+128*w}')
    A('s_waitcnt lgkmcnt(0)')
    for base in (AF, BF):
        for w in range(1, 8):
            A(f'v_add_f32 v{base}, v{base}, v{base+2*w}')
            A(f'v_add_f32 v{base+1}, v{base+1}, v{base+2*w+1}')
    A(f"""
    v_cvt_pk_bf16_f32 v{TM}, v{AF}, v{AF+1}
    v_cvt_pk_bf16_f32 v{TM+1}, v{BF}, v{BF+1}
    v_cmp_gt_u32 vcc, 10, v9
    s_nop 1
    v_cndmask_b32 v{TM}, 0, v{TM}, vcc
    v_cndmask_b32 v{TM+1}, 0, v{TM+1}, vcc
    v_lshlrev_b32 v11, 2, v0
    s_lshl_b32 s33, s24, 11
    s_add_u32 s33, s33, {KVT}
    buffer_store_dword v{TM}, v11, s[20:23], s33 offen
    v_cmp_gt_u32 vcc, 16, v0
    v_mov_b32 v12, 0x7ffffff0
    s_nop 0
    v_cndmask_b32 v11, v12, v11, vcc
    s_lshl_b32 s33, s24, 6
    s_add_u32 s33, s33, {ZP}
    buffer_store_dword v{TM+1}, v11, s[20:23], s33 offen
    """)
    A.st.flush(8, 1)
    A.st.n = 1
    A('s_endpgm')

def gen_k2_wt(A):
    A.label('k2_wt')
    A.reset_counters()
    A('s_waitcnt lgkmcnt(0)')
    wsp_prefetch(A, 's_sub_u32 s43, s2, 208\n    s_lshr_b32 s43, s43, 3')
    A('''
    s_load_dwordx2 s[4:5], s[0:1], 16
    s_load_dwordx2 s[6:7], s[0:1], 56
    s_sub_u32 s24, s2, 240
    s_movk_i32 s26, 1280
    s_mov_b32 s27, 0
    v_and_b32 v1, 63, v0
    v_and_b32 v2, 31, v1
    v_lshrrev_b32 v3, 5, v1
    s_and_b32 s30, s28, 3
    s_lshr_b32 s29, s28, 2
    s_waitcnt lgkmcnt(0)
    ''')
    srd(A, 20, 10, WS_END)
    g1_dma_b_setup(A)
    A('''
    v_and_b32 v5, 15, v1
    v_lshrrev_b32 v5, 2, v5
    v_and_b32 v6, 3, v1
    v_lshlrev_b32 v7, 3, v3
    v_add_u32 v7, v7, v5
    v_lshlrev_b32 v7, 8, v7
    v_xor_b32 v8, s30, v5
    v_lshlrev_b32 v8, 6, v8
    v_add_u32 v7, v7, v8
    v_lshrrev_b32 v8, 4, v1
    v_and_b32 v8, 1, v8
    v_lshlrev_b32 v8, 5, v8
    v_add_u32 v7, v7, v8
    v_lshlrev_b32 v6, 3, v6
    v_add_u32 v7, v7, v6
    s_lshl_b32 s33, s29, 13
    v_add_u32 v7, s33, v7
    s_lshl_b32 s35, s28, 11
    s_lshl_b32 s33, s30, 1
    v_lshrrev_b32 v9, 4, v1
    v_and_b32 v9, 1, v9
    v_add_u32 v9, s33, v9
    s_mov_b32 s33, 45056
    v_mul_lo_u32 v9, v9, s33
    v_lshlrev_b32 v10, 8, v3
    v_add_u32 v9, v9, v10
    v_and_b32 v10, 15, v1
    v_lshlrev_b32 v10, 4, v10
    v_add_u32 v9, v9, v10
    s_lshl_b32 s33, s29, 10
    v_add_u32 v9, s33, v9
    s_mov_b32 s18, 983040
    s_mov_b32 s19, 0x00020000
    ''')
    def tile_scalars(q):
        A(f'''
        s_add_u32 s40, s24, {16*q}
        s_mul_i32 s41, s40, 52429
        s_lshr_b32 s41, s41, 18
        s_mul_i32 s42, s41, 5
        s_sub_u32 s42, s40, s42
        ''')
    for q in range(7):
        if q == 6:
            A('s_cmp_ge_u32 s24, 14')
            A('s_cbranch_scc1 k2_wt_issued')
        tile_scalars(q)
        A(f'''
        s_cmp_lt_u32 s41, 10
        s_cselect_b32 s16, s4, s6
        s_cselect_b32 s17, s5, s7
        s_cselect_b32 s43, 0, 10
        s_and_b32 s17, s17, 0xffff
        s_sub_u32 s43, s41, s43
        s_mul_i32 s43, s43, {64*1280}
        s_lshl_b32 s44, s42, 8
        s_add_u32 s43, s43, s44
        s_add_u32 m0, s35, {16384*q}
        s_nop 0
        buffer_load_dwordx4 v{VOB}, s[16:19], s43 offen lds
        buffer_load_dwordx4 v{VOB+1}, s[16:19], s43 offen offset:1024 lds
        ''')
    A.label('k2_wt_issued')
    A('''
    s_waitcnt vmcnt(0)
    s_barrier
    ''')
    for q in range(7):
        if q == 6:
            A('s_cmp_ge_u32 s24, 14')
            A('s_cbranch_scc1 k2_wt_done')
        tile_scalars(q)
        base = 16 + 8 * q
        A(f'v_add_u32 v11, {16384*q}, v7')
        for kk in range(2):
            A(f'ds_read_b64_tr_b16 {vr(base+4*kk,2)}, v11 offset:{kk*4096}')
            A(f'ds_read_b64_tr_b16 {vr(base+4*kk+2,2)}, v11 offset:{kk*4096+1024}')
        A(f'''
        s_mul_i32 s43, s42, {8*45056}
        s_lshl_b32 s44, s41, 11
        s_add_u32 s43, s43, s44
        s_add_u32 s43, s43, {WT}
        s_waitcnt lgkmcnt(0)
        buffer_store_dwordx4 {vr(base)}, v9, s[20:23], s43 offen
        buffer_store_dwordx4 {vr(base+4)}, v9, s[20:23], s43 offen offset:512
        ''')
    A.label('k2_wt_done')
    A.st.flush(8, 1)
    A.st.n = 1
    A('s_endpgm')

K3_STAGE = 16384
K3_NST = 6
K3_LDS = 98304

def xcd_decode_8x4(A):
    A("""
    s_and_b32 s33, s2, 7
    s_lshr_b32 s26, s2, 3
    s_lshr_b32 s24, s33, 1
    s_lshl_b32 s24, s24, 3
    s_lshr_b32 s25, s26, 2
    s_add_u32 s24, s24, s25
    s_and_b32 s25, s33, 1
    s_lshl_b32 s25, s25, 2
    s_and_b32 s34, s26, 3
    s_add_u32 s25, s25, s34
    """)

def dma_voffs(A, dst, n, rows_per_wave, stride, base_row_sreg, extra):
    for i in range(n):
        A(f"""
        s_mul_i32 s33, s28, {rows_per_wave}
        s_add_u32 s33, s33, {4*i}
        v_add_u32 v4, s33, v3
        v_and_b32 v5, 15, v4
        v_xor_b32 v5, v5, v2
        v_lshlrev_b32 v5, 4, v5
        v_add_u32 v4, s{base_row_sreg}, v4
        s_movk_i32 s34, {stride}
        v_mul_lo_u32 v4, v4, s34
        v_add_u32 v4, v4, v5
        v_add_u32 v{dst+i}, {extra - 1024*(i & 3)}, v4
        """)

def rr(kb, off, n=4):
    k, b = kb
    return f'{k}[{b+off}:{b+off+n-1}]'

def gen_k3(A):
    A.label('k3_kernel')
    A.st()
    A.reset_counters()
    A("""
    s_cmp_ge_u32 s2, 256
    s_cbranch_scc1 k3_done
    s_load_dwordx4 s[4:7], s[0:1], 40
    s_load_dwordx2 s[10:11], s[0:1], 80
    v_lshrrev_b32 v2, 6, v0
    v_and_b32 v1, 63, v0
    v_readfirstlane_b32 s28, v2
    v_and_b32 v2, 15, v1
    v_lshrrev_b32 v3, 4, v1
    """)
    xcd_decode_8x4(A)
    A("""
    s_and_b32 s29, s28, 3
    s_lshr_b32 s30, s28, 2
    """)
    NST = K3_NST; NR = 6
    VDA, VZ, VRD = 120, 122, 125
    ZR = lambda r: 48 + 12 * r
    AFR = lambda b: ('a', 48 + 16 * b)
    A('s_lshl_b32 s40, s24, 6')
    dma_voffs(A, VDA, 2, 8, 4096, 40, 0)
    A(f"""
    s_mul_i32 s33, s25, 6
    s_mul_i32 s34, s30, 3
    s_add_u32 s33, s33, s34
    s_lshl_b32 s33, s33, 16
    s_lshl_b32 s34, s29, 10
    s_add_u32 s33, s33, s34
    s_add_u32 s33, s33, {Z2NT}
    v_lshlrev_b32 v4, 4, v1
    v_add_u32 v{VZ}, s33, v4
    """)
    for j in range(1, 3):
        A(f'v_add_u32 v{VZ+j}, {65536*j}, v{VZ}')
    A(f"""
    s_lshl_b32 s42, s28, 11
    s_and_b32 s33, s2, 7
    s_lshl_b32 s49, s33, 1
    s_add_u32 s49, s49, s26
    s_waitcnt lgkmcnt(0)
    """)
    srd(A, 12, 4, 2048 * 4096)
    srd(A, 20, 10, WS_END)
    def dma(c):
        st = c % NST
        A(f's_add_u32 s44, s49, {c}')
        A(f's_and_b32 s44, s44, 15')
        A(f's_lshl_b32 s44, s44, 8')
        A(f's_add_u32 m0, s42, {st*K3_STAGE}')
        for i in range(2):
            A.vm(('d', c), f'buffer_load_dwordx4 v{VDA+i}, s[12:15], s44 offen offset:{1024*i} lds')
    def zloads(c):
        A(f's_add_u32 s45, s49, {c}')
        A(f's_and_b32 s45, s45, 15')
        A(f's_lshl_b32 s45, s45, 12')
        for j in range(3):
            A.vm(('z', c), f'buffer_load_dwordx4 {vr(ZR(c % NR)+4*j)}, v{VZ+j}, s[20:23], s45 offen')
    def read_list(c):
        st = c % NST; fb = AFR(c & 1)
        return [f'ds_read_b128 {rr(fb, 4*i)}, v{VRD + st//3} offset:{(st%3)*K3_STAGE + 4096*i}' for i in range(4)]
    K3UP = int(os.environ.get('K3UP', '2'))
    for c in range(K3UP):
        dma(c)
        zloads(c)
    srd(A, 16, 6, 4096)
    A(f"""
    s_lshl_b32 s33, s29, 2
    v_add_u32 v4, s33, v3
    v_xor_b32 v4, v4, v2
    v_lshlrev_b32 v4, 4, v4
    v_lshlrev_b32 v5, 8, v2
    v_add_u32 v{VRD}, v4, v5
    v_add_u32 v{VRD+1}, {3*K3_STAGE}, v{VRD}
    """)
    A(f"""
    s_and_b32 s53, s2, 7
    s_lshr_b32 s53, s53, 1
    s_lshl_b32 s53, s53, 5
    s_add_u32 s53, s53, s26
    s_lshl_b32 s33, s53, 4
    v_add_u32 v4, s33, v2
    s_movk_i32 s34, 1280
    v_mul_lo_u32 v5, v4, s34
    v_lshlrev_b32 v6, 4, v3
    v_add_u32 v5, v5, v6
    s_and_b32 s35, s2, 1
    s_lshl_b32 s35, s35, 4
    s_lshl_b32 s34, s28, 1
    s_add_u32 s35, s35, s34
    s_mul_i32 s36, s35, 40
    s_add_u32 s37, s36, {PQ}
    v_lshlrev_b32 v7, 6, v2
    v_add_u32 v7, v7, v6
    s_lshl_b32 s38, s35, 11
    s_add_u32 s38, s38, {KVT}
    s_lshl_b32 s39, s35, 6
    s_add_u32 s39, s39, {ZP}
    """)
    OF = 16
    def o_loads():
        for q in range(2):
            b = OF + 16 * q
            A.vm('o', f'buffer_load_dwordx4 {vr(b)}, v5, s[20:23], s37 offen offset:{40*q}')
            A.vm('o', f'buffer_load_dwordx4 {vr(b+4)}, v7, s[20:23], s38 offen offset:{2048*q}')
            A.vm('o', f'buffer_load_dwordx4 {vr(b+8)}, v7, s[20:23], s38 offen offset:{2048*q+1024}')
            A.vm('o', f'buffer_load_dwordx4 {vr(b+12)}, v6, s[20:23], s39 offen offset:{64*q}')
    OD = 80
    def o_mfma():
        A.wait_vm('o')
        for q in range(2):
            b = OF + 16 * q; d = OD + 12 * q
            A(f'v_mfma_f32_16x16x32_bf16 a[{d}:{d+3}], {vr(b+4)}, {vr(b)}, 0')
            A(f'v_mfma_f32_16x16x32_bf16 a[{d+4}:{d+7}], {vr(b+8)}, {vr(b)}, 0')
            A(f'v_mfma_f32_16x16x32_bf16 a[{d+8}:{d+11}], {vr(b+12)}, {vr(b)}, 0')
    A(f"""
    s_mul_i32 s36, s53, 45056
    s_add_u32 s36, s36, {OH}
    s_mul_i32 s33, s35, 20
    v_lshlrev_b32 v8, 2, v3
    v_add_u32 v8, s33, v8
    v_lshlrev_b32 v9, 4, v2
    v_cmp_eq_u32 s[50:51], 0, v3
    v_mov_b32 v127, 0x7ffffff0
    """)
    def coloff(dst, col):
        A(f"""
        v_lshrrev_b32 v10, 5, v{col}
        v_lshlrev_b32 v10, 10, v10
        v_bfe_u32 v11, v{col}, 3, 2
        v_lshl_add_u32 v10, v11, 8, v10
        v_bfe_u32 v11, v{col}, 2, 1
        v_lshl_add_u32 v10, v11, 3, v10
        v_add_u32 v{dst}, v10, v9
        """)
    def o_epi(q):
        D = 32; t = 16 + 4 * q
        for k in range(9):
            A(f'v_accvgpr_read_b32 v{D+k}, a{OD+12*q+k}')
        A(f'v_add_u32 v12, {20*q}, v8')
        coloff(42, 12)
        A(f'v_add_u32 v12, 16, v12')
        coloff(43, 12)
        A(f'v_cndmask_b32 v43, v127, v43, s[50:51]')
        A(f'v_cvt_pk_bf16_f32 v{t}, v{D+8}, v{D+8}')
        A(f'v_lshlrev_b32 v{D+8}, 16, v{t}')
        A(f'v_add_f32 v{D+8}, {f32(1e-6)}, v{D+8}')
        A(f'v_cvt_pk_bf16_f32 v{t}, v{D+8}, v{D+8}')
        A(f'v_lshlrev_b32 v{D+8}, 16, v{t}')
        A(f'v_rcp_f32 v{D+8}, v{D+8}')
        for k in range(0, 8, 2):
            rnd_pair(A, t, D + k, D + k + 1)
        for k in range(8):
            A(f'v_mul_f32 v{D+k}, v{D+k}, v{D+8}')
        for k in range(4):
            A(f'v_cvt_pk_bf16_f32 v{t+k}, v{D+2*k}, v{D+2*k+1}')
        A.vm('os', f'buffer_store_dwordx2 {vr(t,2)}, v42, s[20:23], s36 offen')
        A.vm('os', f'buffer_store_dwordx2 {vr(t+2,2)}, v43, s[20:23], s36 offen')
    Z1R = 24; BS = 30
    A(f"""
    s_lshl_b32 s34, s29, 4
    s_add_u32 s33, s40, s34
    v_add_u32 v13, s33, v2
    s_movk_i32 s34, 1536
    v_mul_lo_u32 v14, v13, s34
    v_lshlrev_b32 v11, 3, v3
    v_add_u32 v14, v14, v11
    s_mul_i32 s52, s25, 192
    s_mul_i32 s33, s30, 96
    s_add_u32 s52, s52, s33
    s_add_u32 s47, s52, {Z1}
    v_lshlrev_b32 v13, 1, v13
    v_lshrrev_b32 v10, 1, v3
    v_lshlrev_b32 v10, 8, v10
    v_and_b32 v11, 1, v3
    v_lshl_add_u32 v10, v11, 3, v10
    v_add_u32 v15, v10, v9
    s_lshl_b32 s33, s24, 2
    s_add_u32 s33, s33, s29
    s_mul_i32 s33, s33, 44
    s_mul_i32 s34, s25, 3
    s_add_u32 s33, s33, s34
    s_add_u32 s33, s33, 20
    s_lshl_b32 s48, s33, 10
    s_mul_i32 s33, s30, 1536
    s_add_u32 s48, s48, s33
    s_add_u32 s48, s48, {OH}
    """)
    NC = 16
    A.st()
    A.st()
    A.wait_vm(('d', 0))
    A('s_barrier')
    A.st()
    for r in read_list(0):
        A.ld('fr', r)
    nxt = K3UP
    for c in range(NC):
        fa = AFR(c & 1); zb = ZR(c % NR)
        A.wait_ld_all()
        RL = []
        if c < NC - 1:
            A.wait_vm(('d', c + 1))
            A('s_barrier')
            RL = read_list(c + 1)
        A.wait_vm(('z', c))
        if c in (3, 7, 11):
            A.st()
        todo = []
        while nxt < NC and nxt <= c + NR - 1 and len(todo) < 2:
            todo.append(nxt); nxt += 1
        n = 0
        for i in range(4):
            for j in range(3):
                acc = (j * 4 + i) * 4
                cin = '0' if c == 0 else f'a[{acc}:{acc+3}]'
                A(f'v_mfma_f32_16x16x32_bf16 a[{acc}:{acc+3}], {vr(zb+4*j)}, {rr(fa,4*i)}, {cin}')
                n += 1
                if n % 2 == 0 and RL:
                    A.ld('fr', RL.pop(0))
                for ti, cc in enumerate(todo):
                    if n == 1 + 6 * ti:
                        dma(cc)
                    if n == 3 + 6 * ti:
                        zloads(cc)
        assert not RL
        if c == 10:
            o_loads()
        if c == 12:
            o_mfma()
        if c == 13:
            o_epi(0)
        if c == 14:
            o_epi(1)
            for j in range(3):
                A.vm('z1', f'buffer_load_dwordx2 {vr(Z1R+2*j,2)}, v14, s[20:23], s47 offen offset:{32*j}')
            A.vm('z1', f'buffer_load_ushort v{BS}, v13, s[16:19], 0 offen')
    A.st()
    A(f"""
    v_lshlrev_b32 v4, 4, v1
    s_mul_i32 s33, s28, 12288
    v_add_u32 v5, s33, v4
    s_mul_i32 s33, s30, 49152
    s_lshl_b32 s34, s29, 10
    s_add_u32 s33, s33, s34
    v_add_u32 v6, s33, v4
    s_barrier
    """)
    for tl in range(12):
        A(f'ds_write_b128 v5, a[{4*tl}:{4*tl+3}] offset:{1024*tl}')
    A('s_waitcnt lgkmcnt(0)')
    A('s_barrier')
    RB = 48
    for src in range(4):
        for j in range(3):
            A(f'ds_read_b128 {vr(RB+12*src+4*j)}, v6 offset:{src*12288 + 4096*j}')
    A('s_waitcnt lgkmcnt(0)')
    for src in range(1, 4):
        for k in range(12):
            A(f'v_add_f32 v{RB+k}, v{RB+k}, v{RB+12*src+k}')
    A.wait_vm('z1')
    A(f'v_lshlrev_b32 v{BS}, 16, v{BS}')
    TP = 100
    for k in range(0, 12, 2):
        rnd_pair(A, TP + k // 2, RB + k, RB + k + 1)
    for k in range(12):
        A(f'v_add_f32 v{RB+k}, v{RB+k}, v{BS}')
    for k in range(0, 12, 2):
        rnd_pair(A, TP + k // 2, RB + k, RB + k + 1)
    for k in range(6):
        A(f'v_lshlrev_b32 v{TP+2*k}, 16, v{Z1R+k}')
        A(f'v_and_b32 v{TP+2*k+1}, 0xffff0000, v{Z1R+k}')
    for k in range(12):
        A(f'v_mul_f32 v{RB+k}, v{RB+k}, v{TP+k}')
    for k in range(6):
        A(f'v_cvt_pk_bf16_f32 v{Z1R+k}, v{RB+2*k}, v{RB+2*k+1}')
    for j in range(3):
        A(f'buffer_store_dwordx2 {vr(Z1R+2*j,2)}, v15, s[20:23], s48 offen offset:{512*j}')
    A.st.flush(8, 2)
    A.label('k3_done')
    A('s_endpgm')

K4_LDS = 163840
def k4_stage(s):
    return ('a', 80 + 36 * s) if s < 1 else ('v', 20 + 36 * (s - 1))

def gen_k4(A):
    A.label('k4_kernel')
    A.st()
    A.reset_counters()
    A("""
    s_cmp_ge_u32 s2, 256
    s_cbranch_scc1 k4_done
    s_load_dwordx2 s[4:5], s[0:1], 0
    s_load_dwordx2 s[6:7], s[0:1], 64
    s_load_dwordx2 s[10:11], s[0:1], 80
    v_lshrrev_b32 v2, 6, v0
    v_and_b32 v1, 63, v0
    v_readfirstlane_b32 s28, v2
    v_and_b32 v2, 15, v1
    v_lshrrev_b32 v3, 4, v1
    """)
    xcd_decode_8x4(A)
    VW, VO = 5, 10
    A(f"""
    s_and_b32 s29, s28, 3
    s_lshr_b32 s30, s28, 2
    v_lshlrev_b32 v4, 4, v1
    s_lshl_b32 s34, s29, 10
    s_mul_i32 s33, s30, 20480
    s_add_u32 s34, s34, s33
    s_mul_i32 s33, s25, {5*45056}
    s_add_u32 s33, s33, s34
    s_add_u32 s33, s33, {WT}
    v_add_u32 v{VW}, s33, v4
    s_mul_i32 s33, s24, {4*45056}
    s_add_u32 s33, s33, s34
    s_add_u32 s33, s33, {OH}
    v_add_u32 v{VO}, s33, v4
    """)
    for j in range(1, 5):
        A(f'v_add_u32 v{VW+j}, {45056*j}, v{VW}')
    for i in range(1, 4):
        A(f'v_add_u32 v{VO+i}, {45056*i}, v{VO}')
    A('s_waitcnt lgkmcnt(0)')
    srd(A, 20, 10, WS_END)
    NS = 4
    def loads(step):
        sb = k4_stage(step % NS)
        A(f's_mov_b32 s44, {4096*step}')
        for j in range(5):
            A.vm(('m', step), f'buffer_load_dwordx4 {rr(sb, 4*j)}, v{VW+j}, s[20:23], s44 offen')
        for i in range(4):
            A.vm(('m', step), f'buffer_load_dwordx4 {rr(sb, 20+4*i)}, v{VO+i}, s[20:23], s44 offen')
    A.st()
    for s_ in range(NS):
        loads(s_)
    srd(A, 12, 4, 2048 * 1280)
    srd(A, 16, 6, 2048 * 1280)
    A(f"""
    s_lshl_b32 s33, s24, 6
    s_lshl_b32 s34, s29, 4
    s_add_u32 s33, s33, s34
    v_add_u32 v14, s33, v2
    s_movk_i32 s34, 1280
    v_mul_lo_u32 v14, v14, s34
    v_lshlrev_b32 v15, 3, v3
    v_add_u32 v14, v14, v15
    s_mul_i32 s46, s25, 160
    s_mul_i32 s33, s30, 96
    s_add_u32 s46, s46, s33
    """)
    nxt = NS
    for step in range(6):
        sb = k4_stage(step % NS)
        if step == 5:
            A('s_cmp_eq_u32 s30, 0')
            A('s_cbranch_scc1 k4_skip5')
        A.wait_vm(('m', step))
        if step in (0, 2, 4):
            A.st()
        n = 0
        for i in range(4):
            for j in range(5):
                acc = (j * 4 + i) * 4
                cin = '0' if step == 0 else f'a[{acc}:{acc+3}]'
                A(f'v_mfma_f32_16x16x32_bf16 a[{acc}:{acc+3}], {rr(sb,4*j)}, {rr(sb,20+4*i)}, {cin}')
                n += 1
                if n == 1 and nxt < 6 and nxt <= step + NS - 1:
                    loads(nxt); nxt += 1
    A.label('k4_skip5')
    A('s_waitcnt vmcnt(0)')
    A.reset_counters()
    A.st()
    XR = 116
    for j in range(3):
        A.vm('x', f'buffer_load_dwordx2 {vr(XR+2*j,2)}, v14, s[12:15], s46 offen offset:{32*j}')
    A(f"""
    v_lshlrev_b32 v4, 4, v1
    s_mul_i32 s33, s28, 20480
    v_add_u32 v5, s33, v4
    s_lshl_b32 s33, s29, 10
    s_mul_i32 s34, s30, 12288
    s_add_u32 s33, s33, s34
    v_add_u32 v6, s33, v4
    v_add_u32 v7, 40960, v6
    v_add_u32 v8, 81920, v6
    v_add_u32 v9, 122880, v6
    s_nop 4
    """)
    for tl in range(20):
        A(f'ds_write_b128 v5, a[{4*tl}:{4*tl+3}] offset:{1024*tl}')
    A('s_waitcnt lgkmcnt(0)')
    A('s_barrier')
    RB = 20
    for src in range(8):
        for j in range(3):
            A(f'ds_read_b128 {vr(RB+12*src+4*j)}, v{6 + src//2} offset:{(src&1)*20480 + 4096*j}')
    A('s_waitcnt lgkmcnt(0)')
    RA = RB; RBB = RB + 48
    for base in (RA, RBB):
        for src in range(1, 4):
            for k in range(12):
                A(f'v_add_f32 v{base+k}, v{base+k}, v{base+12*src+k}')
    A.st()
    A.wait_vm('x')
    TP = 32
    for k in range(0, 12, 2):
        rnd_pair(A, TP + k // 2, RA + k, RA + k + 1)
    for k in range(0, 12, 2):
        rnd_pair(A, TP + k // 2, RBB + k, RBB + k + 1)
    for k in range(6):
        A(f'v_lshlrev_b32 v{TP+2*k}, 16, v{XR+k}')
        A(f'v_and_b32 v{TP+2*k+1}, 0xffff0000, v{XR+k}')
    for k in range(12):
        A(f'v_add_f32 v{RA+k}, v{TP+k}, v{RA+k}')
    for k in range(0, 12, 2):
        rnd_pair(A, TP + k // 2, RA + k, RA + k + 1)
    for k in range(12):
        A(f'v_add_f32 v{RA+k}, v{RA+k}, v{RBB+k}')
    for k in range(6):
        A(f'v_cvt_pk_bf16_f32 v{XR+k}, v{RA+2*k}, v{RA+2*k+1}')
    for j in range(2):
        A(f'buffer_store_dwordx2 {vr(XR+2*j,2)}, v14, s[16:19], s46 offen offset:{32*j}')
    A('s_cmp_lg_u32 s30, 0')
    A('s_cbranch_scc1 k4_end')
    A(f'buffer_store_dwordx2 {vr(XR+4,2)}, v14, s[16:19], s46 offen offset:64')
    A.label('k4_end')
    A.st.flush(8, 3)
    A.label('k4_done')
    A('s_endpgm')

def kd(name, vgpr, accum, sgpr=100):
    return f'''
.amdhsa_kernel {name}
  .amdhsa_next_free_vgpr {vgpr}
  .amdhsa_next_free_sgpr {sgpr}
  .amdhsa_accum_offset {accum}
  .amdhsa_group_segment_fixed_size 0
  .amdhsa_kernarg_size 88
  .amdhsa_user_sgpr_count 2
  .amdhsa_user_sgpr_kernarg_segment_ptr 1
  .amdhsa_system_sgpr_workgroup_id_x 1
.end_amdhsa_kernel
'''

def main():
    hdr = open(f'cdna_kernels/{NAME}.s.ref').read().split('\n')
    hdr = [l for l in hdr if l.startswith(';') and '@launch' not in l]
    out = '\n'.join(hdr) + '\n'
    out += f'; @launch kernel=k1_kernel grid=(256,1,1) block=(512,1,1) lds={G1_LDS}\n'
    out += f'; @launch kernel=k2_kernel grid=(256,1,1) block=(512,1,1) lds={G1_LDS}\n'
    out += f'; @launch kernel=k3_kernel grid=(256,1,1) block=(512,1,1) lds={K3_LDS}\n'
    out += f'; @launch kernel=k4_kernel grid=(256,1,1) block=(512,1,1) lds={K4_LDS}\n'
    out += '.amdgcn_target "amdgcn-amd-amdhsa--gfx950"\n.text\n'
    for nm, fn in (('k1_kernel', gen_k1), ('k2_kernel', gen_k2), ('k3_kernel', gen_k3), ('k4_kernel', gen_k4)):
        A = Asm()
        A.st = Stamps(A, nm[:2] in STAMP)
        A.flags = {'ldf': os.environ.get('LDF', ''), 'ldi': os.environ.get('LDI', ''), 'st': os.environ.get('STF', '')}
        fn(A)
        out += f'.globl {nm}\n.p2align 8\n.type {nm},@function\n'
        out += A.render()
    out += '.section .rodata,"a"\n.p2align 6\n'
    out += kd('k1_kernel', 256, 256)
    out += kd('k2_kernel', 256, 256)
    out += kd('k3_kernel', 256, 128)
    out += kd('k4_kernel', 256, 128)
    open(os.environ.get('OUT', f'cdna_kernels/{NAME}.s'), 'w').write(out)

if __name__ == '__main__':
    main()
```
